```python
import torch

def _softmax(x, axis=-1):
    return torch.softmax(x, dim=axis)
def _gelu(x):
    return torch.nn.functional.gelu(x, approximate="tanh")
def _silu(x):
    return torch.nn.functional.silu(x)
def _sigmoid(x):
    return torch.sigmoid(x)
def _layernorm(x, axis=-1, eps=1e-5):
    m = x.mean(dim=axis, keepdim=True)
    v = x.var(dim=axis, keepdim=True, unbiased=False)
    return (x - m) / torch.sqrt(v + eps)
def _scatter_add(tgt, idx, src, axis=0):
    return tgt.clone().index_add_(axis, idx, src)
def _segment_sum(src, seg, n):
    out = torch.zeros((n,) + src.shape[1:], dtype=src.dtype)
    return out.index_add_(0, seg, src)
def _pad(x, pw):
    flat = tuple(v for pair in reversed(pw) for v in pair)
    return torch.nn.functional.pad(x, flat)

kernel_name = 'interleave_layers__sliding_block_cached__glu_gated_reglu__decode'

def setup_inputs():

    _w = (lambda a: (lambda t: t.to(torch.bfloat16) if t.is_floating_point() else t)(torch.as_tensor(a)))
    def _A_setup():
        B, Sq, D = 4, 1, 512
        Hq, Hkv, Sk, Dh = 32, 8, 16384, 128
        assert Hq % Hkv == 0, (Hq, Hkv)
        return {
            "x": _w((lambda *s: torch.randn(*s, dtype=torch.bfloat16) * 0.05)(B, Sq, D)),
            "k_cache": _w((lambda *s: torch.randn(*s, dtype=torch.bfloat16) * 0.8)(B, Hkv, Sk, Dh)),
            "v_cache": _w((lambda *s: torch.randn(*s, dtype=torch.bfloat16) * 0.8)(B, Hkv, Sk, Dh)),
            "wq": _w((lambda *s: torch.randn(*s, dtype=torch.bfloat16) * 0.8)(D, Hq * Dh) * (D ** -0.5)),
            "wo": _w((lambda *s: torch.randn(*s, dtype=torch.bfloat16) * 0.8)(Hq * Dh, D) * ((Hq * Dh) ** -0.5)),
        }
    _A_in = _A_setup()

    def _B_setup():
        B, S, D, F = 4, 1, 512, 1792
        return {
            "x": _w((lambda *s: torch.randn(*s, dtype=torch.bfloat16) * 0.05)(B, S, D)),
            "W_gate": _w((lambda *s: torch.randn(*s, dtype=torch.bfloat16) * 0.2)(D, F) * (2.0 / D) ** 0.5),
            "W_up": _w((lambda *s: torch.randn(*s, dtype=torch.bfloat16) * 0.2)(D, F) * (2.0 / D) ** 0.5),
            "W_down": _w((lambda *s: torch.randn(*s, dtype=torch.bfloat16) * 0.2)(F, D) * (1.0 / F) ** 0.5),
        }
    _B_in = _B_setup()

    return {
        "A_x": _A_in["x"],
        "A_k_cache": _A_in["k_cache"],
        "A_v_cache": _A_in["v_cache"],
        "A_wq": _A_in["wq"],
        "A_wo": _A_in["wo"],
        "B_x": _B_in["x"],
        "B_W_gate": _B_in["W_gate"],
        "B_W_up": _B_in["W_up"],
        "B_W_down": _B_in["W_down"],
    }

def reference(A_x, A_k_cache, A_v_cache, A_wq, A_wo, B_x, B_W_gate, B_W_up, B_W_down):
    def _A_ref(x, k_cache, v_cache, wq, wo):
        B, Sq, D = x.shape
        Hq, Dh = 32, 128
        Hkv, Sk = k_cache.shape[1], k_cache.shape[2]
        W = min(4096, max(256, Sk // 4))
        rep = Hq // Hkv
        q = (lambda x, *d: x.permute(*d))((x @ wq).reshape(B, Sq, Hq, Dh), 0, 2, 1, 3)
        k = (lambda x, n, axis: torch.repeat_interleave(x, n, dim=axis))(k_cache[:, :, Sk - W:, :], rep, axis=1)
        v = (lambda x, n, axis: torch.repeat_interleave(x, n, dim=axis))(v_cache[:, :, Sk - W:, :], rep, axis=1)
        scores = torch.einsum("bhqd,bhkd->bhqk", q, k) * (Dh ** -0.5)
        p = _softmax(scores, axis=-1)
        o = torch.einsum("bhqk,bhkd->bhqd", p, v)
        return (lambda x, *d: x.permute(*d))(o, 0, 2, 1, 3).reshape(B, Sq, Hq * Dh) @ wo

    def _B_ref(x, W_gate, W_up, W_down):
        gate = torch.einsum("bsd,df->bsf", x, W_gate)
        up = torch.einsum("bsd,df->bsf", x, W_up)
        gate = gate * (lambda x, dt: x.to(dt))(gate > 0, gate.dtype)
        h = gate * up
        return torch.einsum("bsf,fd->bsd", h, W_down)

    x = A_x
    x = x + _A_ref(_layernorm(x, axis=-1), A_k_cache, A_v_cache, A_wq, A_wo)
    x = x + _B_ref(_layernorm(x, axis=-1), B_W_gate, B_W_up, B_W_down)
    x = x + _A_ref(_layernorm(x, axis=-1), A_k_cache, A_v_cache, A_wq, A_wo)
    x = x + _B_ref(_layernorm(x, axis=-1), B_W_gate, B_W_up, B_W_down)
    return x
```

```python
import re

REG_RE = re.compile(r'(?<![\w.])([vsa])(\d+)(?![\w\[])|(?<![\w.])([vsa])\[(\d+):(\d+)\]|(?<![\w.])(vcc|exec|m0)(?![\w])')


def regs_of(op):
    out = set()
    for m in REG_RE.finditer(op):
        if m.group(1):
            out.add(m.group(1) + m.group(2))
        elif m.group(3):
            for i in range(int(m.group(4)), int(m.group(5)) + 1):
                out.add(m.group(3) + str(i))
        else:
            out.add(m.group(6))
    return out


TRANS = ('v_exp_f32', 'v_log_f32', 'v_rcp_f32', 'v_rsq_f32', 'v_sqrt_f32', 'v_sin_f32', 'v_cos_f32')


class Ins:
    def __init__(self, text):
        self.text = text
        t = text.split(';')[0].strip()
        self.label = t.endswith(':')
        self.op = t.split()[0] if t else ''
        rest = t[len(self.op):].strip()
        ops, depth, cur = [], 0, ''
        for ch in rest:
            if ch == '[':
                depth += 1
            if ch == ']':
                depth -= 1
            if ch == ',' and depth == 0:
                ops.append(cur.strip())
                cur = ''
            else:
                cur += ch
        if cur.strip():
            ops.append(cur.strip())
        self.ops = ops
        op = self.op
        self.mfma = op.startswith('v_mfma') or op.startswith('v_smfmac')
        self.valu = op.startswith('v_') and not self.mfma
        self.vmem = op.startswith('buffer_') or op.startswith('global_')
        self.ds = op.startswith('ds_')
        self.salu = op.startswith('s_')
        self.dpp = self.valu and ('_dpp' in op or 'row_' in t or 'quad_perm' in t)
        self.trans = any(op.startswith(x) for x in TRANS)
        self.permlane = op.startswith('v_permlane')
        self.rdlane = op.startswith('v_readlane') or op.startswith('v_readfirstlane')
        self.dot = op.startswith('v_dot')
        self.states = 1
        if op == 's_nop':
            self.states = int(ops[0], 0) + 1
        if self.label or not op:
            self.states = 0
        self.w, self.r = set(), set()
        self.cregs = set()
        self.abregs = set()
        self.ldsdma = self.vmem and re.search(r'\blds\b', t) is not None
        self.widestore = False
        self.lanesel = set()
        if self.mfma:
            self.passes = 2 if '4x4x4' in op else (4 if '16x16' in op else 8)
            self.w = regs_of(ops[0])
            self.abregs = regs_of(ops[1]) | regs_of(ops[2])
            if op.startswith('v_smfmac'):
                self.cregs = regs_of(ops[0])
                self.abregs |= regs_of(ops[3].split()[0])
            else:
                self.cregs = regs_of(ops[3].split()[0])
            self.r = self.abregs | self.cregs
        elif self.valu:
            if self.permlane:
                self.w = regs_of(ops[0]) | regs_of(ops[1])
                self.r = set(self.w)
            else:
                self.w = regs_of(ops[0])
                srcs = ops[1:]
                if op.startswith('v_add_co') or op.startswith('v_addc_co') or op.startswith('v_sub_co'):
                    self.w |= regs_of(ops[1])
                    srcs = ops[2:]
                for s in srcs:
                    self.r |= regs_of(s.split(' row_')[0].split(' quad_')[0].split(' bitop3')[0])
                if op.startswith('v_fmac') or op.startswith('v_dot2c') or op.startswith('v_writelane') or self.dpp:
                    self.r |= regs_of(ops[0])
                if op.startswith('v_cndmask') and len(ops) == 3:
                    self.r.add('vcc')
                if op.startswith('v_readlane') or op.startswith('v_writelane'):
                    self.lanesel = regs_of(ops[2])
        elif self.vmem:
            isstore = 'store' in op or ('atomic' in op)
            if self.ldsdma:
                for s in ops:
                    self.r |= regs_of(s)
                self.r.add('m0')
            elif isstore:
                for s in ops:
                    self.r |= regs_of(s)
                if 'x4' in op or 'x3' in op:
                    self.widestore = True
                    self.data = regs_of(ops[0] if op.startswith('buffer_') else ops[1])
            else:
                self.w = regs_of(ops[0])
                for s in ops[1:]:
                    self.r |= regs_of(s)
        elif self.ds:
            if 'read' in op or 'bpermute' in op or 'swizzle' in op:
                self.w = regs_of(ops[0])
                for s in ops[1:]:
                    self.r |= regs_of(s)
            else:
                for s in ops:
                    self.r |= regs_of(s)
        elif self.salu and ops:
            if op.startswith('s_cmp') or op.startswith('s_cbranch') or op.startswith('s_branch') or op in (
                    's_waitcnt', 's_nop', 's_barrier', 's_sleep', 's_setprio', 's_endpgm'):
                for s in ops:
                    self.r |= regs_of(s)
            else:
                self.w = regs_of(ops[0])
                for s in ops[1:]:
                    self.r |= regs_of(s)


def is_s(r):
    return r[0] == 's' or r == 'vcc'


def need(p, i):
    n = 0
    if p.valu:
        wv = {r for r in p.w if r[0] in 'va' and r != 'vcc'}
        ws = {r for r in p.w if is_s(r)}
        if wv:
            if i.mfma and wv & i.r:
                n = max(n, 2)
            if i.dpp and wv & i.r:
                n = max(n, 2)
            if i.permlane and wv & i.r:
                n = max(n, 2)
            if i.rdlane and wv & i.r:
                n = max(n, 1)
            if p.trans and i.valu and not i.trans and wv & i.r:
                n = max(n, 1)
            if p.trans and (i.vmem or i.ds) and wv & i.r:
                n = max(n, 1)
            if p.dot and (wv & (i.r | i.w)) and not (i.op == p.op and not (wv & (regs_of(i.ops[1]) | regs_of(i.ops[2])))):
                n = max(n, 3)
        if ws:
            if i.valu and ws & i.r:
                n = max(n, 2)
            if i.lanesel & ws:
                n = max(n, 4)
            if i.vmem and ws & i.r:
                n = max(n, 5)
            if i.salu and ws & i.r and not i.op.startswith('s_cbranch'):
                n = max(n, 1)
    if p.mfma:
        t = {2: 0, 4: 1, 8: 2}[p.passes]
        if i.mfma:
            if p.w & i.cregs:
                if p.w == i.cregs and p.passes == i.passes:
                    n = max(n, (2, 0, 0)[t])
                else:
                    n = max(n, (4, 6, 10)[t])
            if p.w & i.abregs:
                n = max(n, (5, 8, 12)[t])
            if (p.w & i.w) and not (p.w & i.cregs):
                n = max(n, (5, 8, 12)[t])
        elif (i.valu or i.vmem or i.ds) and (p.w & (i.r | i.w)):
            n = max(n, (5, 8, 12)[t])
        if i.valu and (p.cregs & i.w):
            n = max(n, (1, 3, 7)[t])
    if p.widestore and (p.data & i.w):
        n = max(n, 2 if i.valu else 1)
    if p.salu and 'm0' in p.w and i.ldsdma:
        n = max(n, 1)
    return n


class Emitter:
    def __init__(self):
        self.lines = []
        self.nlab = 0

    def __call__(self, text):
        for ln in text.split('\n'):
            ln = ln.strip()
            if ln:
                self.lines.append(ln)

    def label(self, base='L'):
        self.nlab += 1
        return '%s_%d' % (base, self.nlab)

    def finish(self):
        out = []
        hist = []
        npad = 0
        for ln in self.lines:
            if ln.startswith(';') or ln.startswith('.'):
                out.append(ln)
                continue
            i = Ins(ln)
            if i.label:
                out.append(ln)
                continue
            dist = 0
            pad = 0
            for p in reversed(hist):
                if dist >= 20:
                    break
                req = need(p, i)
                if req - dist > pad:
                    pad = req - dist
                dist += p.states
            if pad > 0:
                nop = Ins('s_nop %d' % (pad - 1))
                out.append('    s_nop %d' % (pad - 1))
                hist.append(nop)
                npad += 1
            out.append('    ' + ln)
            hist.append(i)
            if i.op in ('s_branch', 's_endpgm', 's_setpc_b64'):
                hist = []
            if len(hist) > 40:
                hist = hist[-30:]
        return '\n'.join(out) + '\n'
```

```python
import sys, struct, os
sys.path.insert(0, os.path.dirname(os.path.abspath(__file__)))
from emit import Emitter

KNAME = 'interleave_layers__sliding_block_cached__glu_gated_reglu__decode'

QS = 0x10000
ST = 0x20000
CM = 0x28000
LS = 0x30000
OS = 0x80000
CSA = 0x100000
RB = 0x200000
RU = 8448
RX = 32 * RU
XA = 0x480000
XB = 0x500000
WS_USED = 0x580000
STAMP = 0x10000000

S0 = 131072
S1 = S0 + 16384
LDS_WD = S0
LDS_Q = S0 + 8192
LDS_SIG = S0 + 9216
LDS_PX = S0 + 10240
LDS_ML = S0 + 14336
LDS_TOTAL = 163840


def f32(x):
    return struct.unpack('<I', struct.pack('<f', x))[0]


LOG2E = 1.4426950408889634
SCALE = (128 ** -0.5) * LOG2E


def vr(a, n=1):
    return 'v%d' % a if n == 1 else 'v[%d:%d]' % (a, a + n - 1)


def sr(a, n=1):
    return 's%d' % a if n == 1 else 's[%d:%d]' % (a, a + n - 1)


DPPM = 'row_mask:0xf bank_mask:0xf'


def build(stop=None, stamps=False, late=True, rot=37, xdelay=0, force_slow=False, kvpol='nt', wpol='nt', afirst=30, agap=30, bfirst=12, bgap=14):
    E = Emitter()
    stubs = []

    sWS = 28; sA = 32; sBv = 36; sC = 40; sD = 44; sXs = 48; sOUT = 52; sDBG = 56
    sX, sJ, sB, sW, sE, sMode = 60, 61, 62, 63, 64, 65
    sT0, sT1, sT2, sT3, sCnt, sSig = 66, 67, 68, 69, 70, 71
    sR0, sR16push, sR16pull, sOSb, sLSb, sQ0, sQ1, sXAo, sXBo = 72, 73, 74, 75, 76, 77, 78, 79, 80
    sSTb, sMsk, sWave = 81, 82, 83
    sM1, sM2, sM3, sMN4 = 84, 86, 88, 90
    sMa, sMb = 92, 94
    sTm = 96
    sXA4, sXB4 = 98, 99
    vL = 1
    vStamp = 15

    nst = [0]
    stamp_names = {}

    def stamp(name):
        if not stamps:
            return
        idx = stamp_names.setdefault(name, len(stamp_names))
        E('s_memrealtime s[96:97]\ns_waitcnt lgkmcnt(0)\nv_writelane_b32 v%d, s96, %d' % (vStamp, idx))

    def set_mask(s, val):
        E('s_mov_b32 %s, 0x%x\ns_mov_b32 %s, 0x%x' % (sr(s), val & 0xffffffff, sr(s + 1), val >> 32))

    def srd(d, lo, size):
        E('s_mov_b32 s%d, s%d\ns_mov_b32 s%d, s%d\ns_mov_b32 s%d, %d\ns_mov_b32 s%d, 0x20000' % (d, lo, d + 1, lo + 1, d + 2, size, d + 3))

    def settag(v, u):
        E('s_add_u32 s%d, s%d, %d\ns_and_b32 s%d, s%d, 0xff\nv_mov_b32 v%d, s%d' % (sT0, sE, 1 + u, sT0, sT0, v, sT0))

    def tag(regs, vT):
        for r in regs:
            E('v_and_or_b32 v%d, v%d, s%d, v%d' % (r, r, sMsk, vT))

    def check(regs, vT, acc):
        E('v_xor_b32 v%d, v%d, v%d' % (acc, regs[0], vT))
        for r in regs[1:]:
            E('v_bitop3_b32 v%d, v%d, v%d, v%d bitop3:0xf6' % (acc, acc, r, vT))
        E('v_and_b32 v%d, 0xff, v%d\nv_cmp_ne_u32 vcc, 0, v%d' % (acc, acc, acc))

    def check_sent(regs, acc):
        E('v_max3_u32 v%d, v%d, v%d, v%d' % (acc, regs[0], regs[1], regs[2]))
        rest = regs[3:]
        while len(rest) >= 2:
            E('v_max3_u32 v%d, v%d, v%d, v%d' % (acc, acc, rest[0], rest[1]))
            rest = rest[2:]
        if rest:
            E('v_max_u32 v%d, v%d, v%d' % (acc, acc, rest[0]))
        E('v_cmp_eq_u32 vcc, -1, v%d' % acc)

    def poll(loads, chk):
        top = E.label('Lp'); stub = E.label('Lr')
        E('s_mov_b32 s%d, 0' % sCnt)
        E(top + ':')
        loads()
        E('s_waitcnt vmcnt(0)')
        chk()
        E('s_cbranch_vccnz %s' % stub)
        stubs.append('%s:\ns_add_u32 s%d, s%d, 1\ns_cmp_lt_u32 s%d, 0x8000\ns_cbranch_scc1 %s\ns_branch L_fail' % (stub, sCnt, sCnt, sCnt, top))

    def poll_pipe(nload, nreg, base, loads, chk, dst, stride, D, first, gap):
        top = E.label('Lq'); done = E.label('Ld')
        oks = [E.label('Lo') for _ in range(D)]
        E('s_mov_b32 s%d, 0' % sCnt)
        if first:
            E('s_sleep %d' % first)
        for d in range(D - 1):
            loads(base + d * stride)
            E('s_sleep %d' % gap)
        E(top + ':')
        for d in range(D):
            loads(base + ((d + D - 1) % D) * stride)
            E('s_waitcnt vmcnt(%d)' % ((D - 1) * nload))
            chk(base + d * stride)
            E('s_cbranch_vccz %s' % oks[d])
        E('s_add_u32 s%d, s%d, 1\ns_cmp_lt_u32 s%d, 0x4000\ns_cbranch_scc1 %s\ns_branch L_fail' % (sCnt, sCnt, sCnt, top))
        for d in range(D):
            E(oks[d] + ':')
            for k in range(nreg):
                E('v_mov_b32 v%d, v%d' % (dst + k, base + d * stride + k))
            if d != D - 1:
                E('s_branch %s' % done)
        E(done + ':')

    def lstore(stores, always_sc1=False):
        if always_sc1:
            for s in stores:
                E(s + ' sc1')
            return
        slow = E.label('Ls'); back = E.label('Lb')
        E('s_cmp_eq_u32 s%d, 0\ns_cbranch_scc1 %s' % (sMode, slow))
        for s in stores:
            E(s)
        E(back + ':')
        stubs.append(slow + ':\n' + '\n'.join(s + ' sc1' for s in stores) + '\ns_nop 1\ns_branch ' + back)

    def allred_dpp(op, r):
        E('%s_dpp v%d, v%d, v%d row_ror:4 %s' % (op, r, r, r, DPPM))
        E('%s_dpp v%d, v%d, v%d row_ror:8 %s' % (op, r, r, r, DPPM))

    def allred_rows(op, r, t):
        E('v_mov_b32 v%d, v%d\nv_permlane16_swap_b32 v%d, v%d\n%s v%d, v%d, v%d' % (t, r, r, t, op, r, r, t))
        E('v_mov_b32 v%d, v%d\nv_permlane32_swap_b32 v%d, v%d\n%s v%d, v%d, v%d' % (t, r, r, t, op, r, r, t))

    def quad_reduce(a, b):
        for k in range(4):
            E('v_add_f32 v%d, v%d, v%d' % (a + k, a + k, b + k))
        E('v_permlane32_swap_b32 v%d, v%d\nv_permlane32_swap_b32 v%d, v%d' % (a, a + 2, a + 1, a + 3))
        E('v_add_f32 v%d, v%d, v%d\nv_add_f32 v%d, v%d, v%d' % (a, a, a + 2, a + 1, a + 1, a + 3))
        E('v_permlane16_swap_b32 v%d, v%d\nv_add_f32 v%d, v%d, v%d' % (a, a + 1, a, a, a + 1))
        allred_dpp('v_add_f32', a)

    def common_consts():
        srd(sWS, 26, WS_USED)
        E('s_mul_i32 s%d, s%d, %d\ns_add_u32 s%d, s%d, %d' % (sR0, sX, RX, sR0, sR0, RB))
        E('s_add_u32 s%d, s%d, 4096\ns_add_u32 s%d, s%d, %d' % (sR16push, sR0, sR16pull, sR0, 16 * RU))
        E('s_lshl_b32 s%d, s%d, 16\ns_add_u32 s%d, s%d, %d' % (sOSb, sX, sOSb, sOSb, OS))
        E('s_lshl_b32 s%d, s%d, 9\ns_add_u32 s%d, s%d, %d' % (sLSb, sX, sLSb, sLSb, LS))
        E('s_lshl_b32 s%d, s%d, 12\ns_add_u32 s%d, s%d, %d\ns_add_u32 s%d, s%d, 32768' % (sQ0, sX, sQ0, sQ0, QS, sQ1, sQ0))
        E('s_lshl_b32 s%d, s%d, 10\ns_add_u32 s%d, s%d, %d' % (sSTb, sX, sSTb, sSTb, ST))
        E('s_mov_b32 s%d, %d\ns_mov_b32 s%d, %d' % (sXAo, XA, sXBo, XB))
        E('s_mov_b32 s%d, %d\ns_mov_b32 s%d, %d' % (sXA4, XA + 8192, sXB4, XB + 8192))
        E('s_mov_b32 s%d, 0xffffff00' % sMsk)
        set_mask(sMN4, 0x000F000F000F000F)
        set_mask(sMa, 0x0000000F0000000F)

    def finish_wave():
        E('s_branch L_exit')

    def maybe_stop(name):
        if stop == name:
            finish_wave()
            return True
        return False

    E('s_cmp_ge_u32 s2, 256\ns_cbranch_scc1 L_end')
    E('s_load_dwordx8 s[4:11], s[0:1], 0\ns_load_dwordx2 s[12:13], s[0:1], 32')
    E('s_load_dwordx8 s[16:23], s[0:1], 48\ns_load_dwordx4 s[24:27], s[0:1], 80')
    E('v_lshrrev_b32 v2, 6, v0\nv_and_b32 v1, 63, v0\nv_readfirstlane_b32 s%d, v2' % sWave)
    E('s_and_b32 s%d, s2, 7\ns_lshr_b32 s%d, s2, 3\ns_lshr_b32 s%d, s2, 6' % (sX, sJ, sB))
    E('s_and_b32 s%d, s%d, 3' % (sW, sWave))
    if stamps:
        E('v_mov_b32 v%d, 0' % vStamp)
    stamp('start')
    E('s_cmp_ge_u32 s%d, 4\ns_cbranch_scc1 L_B' % sWave)

    KR = 128
    vKo = [2, 3, 4, 5]; vVo = [6, 7]; vKr = [8, 9, 10, 11]
    E('v_lshrrev_b32 v12, 4, v1\nv_and_b32 v13, 15, v1')
    E('v_xor_b32 v14, v13, v12\nv_lshlrev_b32 v14, 4, v14\nv_lshl_add_u32 v2, v12, 8, v14')
    for k in range(1, 4):
        E('v_xor_b32 v%d, %d, v2' % (vKo[k], 64 * k))
    E('v_lshlrev_b32 v14, 1, v12\nv_xor_b32 v14, v13, v14\nv_lshlrev_b32 v14, 4, v14\nv_lshl_add_u32 v6, v12, 8, v14')
    E('v_xor_b32 v7, 128, v6')
    E('s_lshl_b32 s%d, s%d, 3\ns_add_u32 s%d, s%d, s%d\ns_lshl_b32 s%d, s%d, 22' % (sT0, sB, sT0, sT0, sX, sT0, sT0))
    E('s_and_b32 s%d, s%d, 7\ns_lshl_b32 s%d, s%d, 17\ns_add_u32 s%d, s%d, s%d\ns_add_u32 s%d, s%d, %d' % (sT1, sJ, sT1, sT1, sT0, sT0, sT1, sT0, sT0, 12288 * 256))
    E('s_mul_i32 s%d, s2, %d\ns_add_u32 s%d, s%d, s%d\ns_and_b32 s%d, s%d, 127\ns_lshl_b32 s%d, s%d, 10' % (sT2, rot, sT2, sT2, sW, sT2, sT2, sT2, sT2))
    E('s_lshl_b32 s%d, s%d, 15' % (sT3, sW))
    E('s_waitcnt lgkmcnt(0)')
    E('s_add_u32 s%d, s6, s%d\ns_addc_u32 s%d, s7, 0\ns_mov_b32 s%d, 131072\ns_mov_b32 s%d, 0x20000' % (sA, sT0, sA + 1, sA + 2, sA + 3))
    E('s_add_u32 s%d, s8, s%d\ns_addc_u32 s%d, s9, 0\ns_mov_b32 s%d, 131072\ns_mov_b32 s%d, 0x20000' % (sBv, sT0, sBv + 1, sBv + 2, sBv + 3))
    E('s_load_dword s%d, s[26:27], 0' % sE)
    sOff = sT1

    def kvload(i, srdn, voff):
        E('s_add_u32 m0, s%d, %d' % (sT3, i * 1024))
        if i == 0:
            E('s_mov_b32 s%d, s%d' % (sOff, sT2))
        else:
            E('s_add_u32 s%d, s%d, 4096\ns_and_b32 s%d, s%d, 0x1ffff' % (sOff, sOff, sOff, sOff))
        E('buffer_load_dwordx4 v%d, %s, s%d offen %s lds' % (voff, sr(srdn, 4), sOff, kvpol))

    for i in range(32):
        kvload(i, sA, vKo[i & 3])
        if i == 11:
            E('v_xor_b32 v14, v12, v13\nv_lshlrev_b32 v14, 4, v14\nv_lshl_add_u32 v8, v13, 8, v14\nv_add_u32 v8, s%d, v8' % sT3)
            for c in range(1, 4):
                E('v_xor_b32 v%d, %d, v8' % (vKr[c], 64 * c))
    for t in range(8):
        E('s_waitcnt vmcnt(28)')
        for c in range(4):
            E('ds_read_b128 %s, v%d offset:%d' % (vr(KR + 16 * t + 4 * c, 4), vKr[c], t * 4096))
        E('s_waitcnt lgkmcnt(0)')
        for i in range(4 * t, 4 * t + 4):
            kvload(i, sBv, vVo[i & 1])
    stamp('A_issued')
    common_consts()
    set_mask(sM1, 0x00F000F000F000F0); set_mask(sM2, 0x0F000F000F000F00); set_mask(sM3, 0xF000F000F000F000)
    vVT = [2, 3, 4, 5]
    vPXw, vPXr, vMLa, vQf, vOSw, vLSw = 6, 7, 8, 9, 10, 11
    vRgPush, vRgPull, vXp, vQSw, vSTr, vXpF = 120, 121, 122, 123, 124, 125
    vTg, vAcc = 126, 127
    E('v_lshrrev_b32 v16, 2, v1')
    E('v_and_b32 v17, 7, v16\nv_lshlrev_b32 v17, 1, v17')
    E('v_bfe_u32 v18, v1, 1, 1\ns_lshl_b32 s%d, s%d, 2\nv_add_u32 v18, s%d, v18' % (sT0, sW, sT0))
    E('v_xor_b32 v18, v18, v17\nv_lshlrev_b32 v18, 4, v18\nv_lshl_add_u32 v18, v16, 8, v18')
    E('v_and_b32 v19, 1, v1\nv_lshl_add_u32 v2, v19, 3, v18')
    E('v_xor_b32 v3, 32, v2\nv_add_u32 v4, 0x10000, v2\nv_add_u32 v5, 0x10000, v3')
    E('s_lshl_b32 s%d, s%d, 10\ns_add_u32 s%d, s%d, %d\nv_lshl_add_u32 v%d, v1, 4, s%d' % (sT0, sW, sT0, sT0, LDS_PX, vPXw, sT0))
    E('v_and_b32 v16, 3, v1\nv_lshl_add_u32 v17, v12, 4, v16\nv_lshlrev_b32 v17, 4, v17\nv_add_u32 v%d, %d, v17' % (vPXr, LDS_PX))
    E('v_lshlrev_b32 v17, 3, v1\nv_add_u32 v%d, %d, v17' % (vMLa, LDS_ML))
    E('v_lshlrev_b32 v17, 8, v16\nv_lshl_add_u32 v%d, v12, 4, v17' % vQf)
    E('v_lshlrev_b32 v17, 14, v16\nv_lshl_add_u32 v17, v12, 4, v17')
    E('s_lshl_b32 s%d, s%d, 12\ns_lshl_b32 s%d, s%d, 6\ns_add_u32 s%d, s%d, s%d\nv_add_u32 v%d, s%d, v17' % (sT0, sW, sT1, sJ, sT0, sT0, sT1, vOSw, sT0))
    E('v_lshlrev_b32 v17, 7, v16\ns_lshl_b32 s%d, s%d, 2\nv_add_u32 v%d, s%d, v17' % (sT0, sJ, vLSw, sT0))

    def reducer_addrs(vPush, vPull, vX, vXF, vQ, vS, t0):
        E('v_and_b32 v%d, 3, v1\nv_lshrrev_b32 v%d, 2, v1' % (t0, t0 + 1))
        E('s_lshl_b32 s%d, s%d, 6\nv_lshl_add_u32 v%d, v%d, 4, s%d' % (sT0, sW, t0 + 2, t0, sT0))
        E('s_mul_i32 s%d, s%d, %d\nv_lshl_add_u32 v%d, v%d, 8, v%d\nv_add_u32 v%d, s%d, v%d' % (sT1, sJ, RU, vPush, t0 + 1, t0 + 2, vPush, sT1, vPush))
        if vPull is not None:
            E('v_mul_u32_u24 v%d, %d, v%d\nv_add_u32 v%d, v%d, v%d\ns_lshl_b32 s%d, s%d, 8\nv_add_u32 v%d, s%d, v%d' % (vPull, RU, t0 + 1, vPull, vPull, t0 + 2, sT1, sJ, vPull, sT1, vPull))
        if vX is not None:
            E('v_lshrrev_b32 v%d, 4, v1\nv_lshl_add_u32 v%d, v%d, 2, v%d' % (t0 + 3, t0 + 3, t0 + 3, t0 + 2))
            E('s_lshl_b32 s%d, s%d, 14\ns_lshl_b32 s%d, s%d, 8\ns_add_u32 s%d, s%d, s%d\nv_add_u32 v%d, s%d, v%d' % (sT0, sJ, sT1, sX, sT0, sT0, sT1, t0 + 3, sT0, t0 + 3))
            E('v_and_b32 v%d, 3, v%d\nv_lshl_add_u32 v%d, v%d, 11, v%d' % (vX, t0 + 1, vX, vX, t0 + 3))
            E('s_and_b32 s%d, s%d, 7\ns_lshl_b32 s%d, s%d, 11\nv_add_u32 v%d, s%d, v%d' % (sT0, sJ, sT0, sT0, vXF, sT0, t0 + 3))
        E('v_lshrrev_b32 v%d, 5, v1\nv_lshlrev_b32 v%d, 2, v%d\nv_lshl_add_u32 v%d, v%d, 10, v%d' % (t0 + 3, t0 + 3, t0 + 3, t0 + 3, t0, t0 + 3))
        E('s_lshl_b32 s%d, s%d, 5\ns_lshl_b32 s%d, s%d, 3\ns_add_u32 s%d, s%d, s%d\nv_add_u32 v%d, s%d, v%d' % (sT0, sJ, sT1, sW, sT0, sT0, sT1, vQ, sT0, t0 + 3))
        if vS is not None:
            E('v_lshlrev_b32 v%d, 2, v%d\nv_lshl_add_u32 v%d, v%d, 5, v%d' % (vS, t0, vS, t0 + 1, vS))

    reducer_addrs(vRgPush, vRgPull, vXp, vXpF, vQSw, vSTr, 16)

    QF = 16; SA = 32; PA = 64; PB = 68; PP = 72; TM = 76; CF = 88; vLSE = 92; vM = 93; vLp = 94
    TORD = [0, 2, 4, 6, 1, 3, 5, 7]

    def vfrag_reads(dst, wp, t, e):
        a = vVT[e + 2 * (wp >> 1)]
        off = (wp & 1) * 32768 + t * 8192
        return ['ds_read_b64_tr_b16 %s, v%d offset:%d' % (vr(dst, 2), a, off),
                'ds_read_b64_tr_b16 %s, v%d offset:%d' % (vr(dst + 2, 2), a, off + 4096)]

    FR = [(wp, t, e) for wp in range(4) for t in range(4) for e in range(2)]
    fragreg = {f: KR + 16 * TORD[n // 4] + 4 * (n % 4) for n, f in enumerate(FR)}

    def scores_softmax(phase):
        pend = []
        for k, t in enumerate(TORD):
            for c in range(4):
                E('v_mfma_f32_16x16x32_bf16 %s, %s, %s, %s' % (vr(SA + 4 * t, 4), vr(KR + 16 * t + 4 * c, 4), vr(QF + 4 * c, 4), '0' if c == 0 else vr(SA + 4 * t, 4)))
                for _ in range(2):
                    if pend:
                        E(pend.pop(0))
            if phase == 2:
                for n in range(4 * k, 4 * k + 4):
                    pend += vfrag_reads(fragreg[FR[n]], *FR[n])
            if k == 4:
                pk = []
                for r in range(4):
                    pk.append('v_cndmask_b32 v%d, v%d, v%d, %s' % (PA + r, SA + r, SA + 8 + r, sr(sM1, 2)))
                for r in range(4):
                    pk.append('v_cndmask_b32 v%d, v%d, v%d, %s' % (PA + r, PA + r, SA + 16 + r, sr(sM2, 2)))
                for r in range(4):
                    pk.append('v_cndmask_b32 v%d, v%d, v%d, %s' % (PA + r, PA + r, SA + 24 + r, sr(sM3, 2)))
                pk.append('v_max3_f32 v%d, v%d, v%d, v%d' % (vM, PA, PA + 1, PA + 2))
                pk.append('v_max_f32 v%d, v%d, v%d' % (vM, vM, PA + 3))
                if phase == 2:
                    mix = []
                    while pk or pend:
                        if pend: mix.append(pend.pop(0))
                        if pk: mix.append(pk.pop(0))
                    pend = mix
                else:
                    pend = pk
        for r in range(4):
            E('v_cndmask_b32 v%d, v%d, v%d, %s' % (PB + r, SA + 4 + r, SA + 12 + r, sr(sM1, 2)))
        while pend:
            E(pend.pop(0))
        for r in range(4):
            E('v_cndmask_b32 v%d, v%d, v%d, %s' % (PB + r, PB + r, SA + 20 + r, sr(sM2, 2)))
        for r in range(4):
            E('v_cndmask_b32 v%d, v%d, v%d, %s' % (PB + r, PB + r, SA + 28 + r, sr(sM3, 2)))
        E('v_max3_f32 v%d, v%d, v%d, v%d\nv_max3_f32 v%d, v%d, v%d, v%d' % (vM, vM, PB, PB + 1, vM, vM, PB + 2, PB + 3))
        allred_dpp('v_max_f32', vM)
        allred_rows('v_max_f32', vM, TM)
        E('v_mul_f32_e64 v%d, s%d, -v%d' % (TM, sSig, vM))
        for r in range(8):
            E('v_fma_f32 v%d, v%d, s%d, v%d' % (PA + r, PA + r, sSig, TM))
        for r in range(8):
            E('v_exp_f32 v%d, v%d' % (PA + r, PA + r))
        for r in range(4):
            E('v_cvt_pk_bf16_f32 v%d, v%d, v%d' % (PP + r, PA + 2 * r, PA + 2 * r + 1))
        E('ds_write_b128 v%d, %s' % (vPXw, vr(PP, 4)))
        E('v_add_f32 v%d, v%d, v%d\nv_add_f32 v%d, v%d, v%d' % (TM, PA, PA + 1, TM + 1, PA + 2, PA + 3))
        E('v_add_f32 v%d, v%d, v%d\nv_add_f32 v%d, v%d, v%d' % (TM + 2, PA + 4, PA + 5, TM + 3, PA + 6, PA + 7))
        E('v_add_f32 v%d, v%d, v%d\nv_add_f32 v%d, v%d, v%d\nv_add_f32 v%d, v%d, v%d' % (TM, TM, TM + 1, TM + 2, TM + 2, TM + 3, TM + 5, TM, TM + 2))
        E('v_mov_b32 v%d, v%d' % (TM + 4, vM))
        E('s_lshl_b32 s%d, s%d, 9\nv_add_u32 v%d, s%d, v%d' % (sT0, sW, TM + 6, sT0, vMLa))
        E('ds_write_b64 v%d, %s' % (TM + 6, vr(TM + 4, 2)))

    TC = 84
    MLR = 96

    def coef_reads():
        return ['ds_read_b64 %s, v%d offset:%d' % (vr(MLR + 2 * w, 2), vMLa, 512 * w) for w in range(4)]

    def coef_ops():
        o = []
        o.append('v_max3_f32 v%d, v%d, v%d, v%d' % (vM, MLR, MLR + 2, MLR + 4))
        o.append('v_max_f32 v%d, v%d, v%d' % (vM, vM, MLR + 6))
        for w in range(4):
            o.append('v_sub_f32 v%d, v%d, v%d' % (CF + w, MLR + 2 * w, vM))
        for w in range(4):
            o.append('v_mul_f32 v%d, s%d, v%d' % (CF + w, sSig, CF + w))
        for w in range(4):
            o.append('v_exp_f32 v%d, v%d' % (CF + w, CF + w))
        o.append('v_mul_f32 v%d, v%d, v%d' % (vLp, CF, MLR + 1))
        for w in range(1, 4):
            o.append('v_fmac_f32 v%d, v%d, v%d' % (vLp, CF + w, MLR + 2 * w + 1))
        o.append('v_add_f32_dpp v%d, v%d, v%d row_ror:4 %s' % (vLp, vLp, vLp, DPPM))
        o.append('v_add_f32_dpp v%d, v%d, v%d row_ror:8 %s' % (vLp, vLp, vLp, DPPM))
        for sw in ('16', '32'):
            o.append('v_mov_b32 v%d, v%d' % (TC, vLp))
            o.append('v_permlane%s_swap_b32 v%d, v%d' % (sw, vLp, TC))
            o.append('v_add_f32 v%d, v%d, v%d' % (vLp, vLp, TC))
        o.append('v_rcp_f32 v%d, v%d' % (TC + 1, vLp))
        o.append('v_log_f32 v%d, v%d' % (TC + 2, vLp))
        for w in range(4):
            o.append('v_mul_f32 v%d, v%d, v%d' % (CF + w, CF + w, TC + 1))
        o.append('v_fma_f32 v%d, v%d, s%d, v%d' % (vLSE, vM, sSig, TC + 2))
        return o

    OF = 104

    def publish_O():
        tag(range(OF, OF + 8), vTg)
        E('v_and_or_b32 v%d, v%d, s%d, v%d' % (vLSE, vLSE, sMsk, vTg))
        E('s_mov_b64 exec, %s' % sr(sMN4, 2))
        lstore(['buffer_store_dwordx4 %s, v%d, %s, s%d offen' % (vr(OF, 4), vOSw, sr(sWS, 4), sOSb),
                'buffer_store_dwordx4 %s, v%d, %s, s%d offen offset:2048' % (vr(OF + 4, 4), vOSw, sr(sWS, 4), sOSb)])
        skip = E.label('Lk')
        E('s_cmp_lg_u32 s%d, 0\ns_cbranch_scc1 %s\ns_mov_b64 exec, 15' % (sW, skip))
        lstore(['buffer_store_dword v%d, v%d, %s, s%d offen' % (vLSE, vLSw, sr(sWS, 4), sLSb)])
        E(skip + ':')
        E('s_mov_b64 exec, -1')

    def acc(wp, e):
        return SA + 8 * wp + 4 * e

    def fin_ops(wp):
        o = []
        for e in range(2):
            for r in range(4):
                if wp == 0:
                    o.append('v_mul_f32 v%d, v%d, v%d' % (OF + 4 * e + r, CF, acc(0, e) + r))
                else:
                    o.append('v_fmac_f32 v%d, v%d, v%d' % (OF + 4 * e + r, CF + wp, acc(wp, e) + r))
        return o

    E('s_waitcnt lgkmcnt(0)')
    settag(vTg, 0)
    E('s_barrier')
    stamp('A_b1')
    E('v_add_u32 v16, %d, v%d' % (LDS_Q, vQf))
    E('v_mov_b32 v17, %d\nds_read_b64 %s, v17' % (LDS_SIG, vr(TM, 2)))
    E('v_mov_b32 v%d, v16' % (TM + 8))
    for c in range(4):
        E('ds_read_b128 %s, v%d offset:%d' % (vr(QF + 4 * c, 4), TM + 8, 64 * c))
    E('s_waitcnt lgkmcnt(0)')
    E('v_readfirstlane_b32 s%d, v%d\nv_readfirstlane_b32 s%d, v%d' % (sSig, TM, sMode, TM + 1))
    scores_softmax(1)
    stamp('A_sm1')
    PF = 16
    for t in range(4):
        E('s_waitcnt vmcnt(%d) lgkmcnt(0)' % (24 - 8 * t))
        E('s_barrier')
        if t == 0:
            for s in coef_reads():
                E(s)
        for wp in range(4):
            E('ds_read_b128 %s, v%d offset:%d' % (vr(PF + 4 * wp, 4), vPXr, wp * 1024 + t * 64))
        if t == 0:
            E('s_waitcnt lgkmcnt(4)')
            for s in coef_ops():
                E(s)
        for half in range(2):
            fr = [(wp, e) for wp in (2 * half, 2 * half + 1) for e in range(2)]
            base = 64 if half == 0 else 104
            for n, (wp, e) in enumerate(fr):
                for s in vfrag_reads(base + 4 * n, wp, t, e):
                    E(s)
        for half in range(2):
            fr = [(wp, e) for wp in (2 * half, 2 * half + 1) for e in range(2)]
            base = 64 if half == 0 else 104
            E('s_waitcnt lgkmcnt(%d)' % (8 if half == 0 else 0))
            for n, (wp, e) in enumerate(fr):
                E('v_mfma_f32_16x16x32_bf16 %s, %s, %s, %s' % (vr(acc(wp, e), 4), vr(base + 4 * n, 4), vr(PF + 4 * wp, 4), '0' if t == 0 else vr(acc(wp, e), 4)))
    for wp in range(4):
        for s in fin_ops(wp):
            E(s)
    stamp('A_pv1')
    publish_O()
    E('s_barrier')
    if maybe_stop('OS0'):
        pass
    else:
        RA, RBb = 16, 20

        def red_gather(vaddr, s0, s16, partial=False):
            def loads():
                E('buffer_load_dwordx4 %s, v%d, %s, s%d offen sc1' % (vr(RA, 4), vaddr, sr(sWS, 4), s0))
                if partial:
                    E('s_mov_b64 exec, %s' % sr(sMb, 2))
                E('buffer_load_dwordx4 %s, v%d, %s, s%d offen sc1' % (vr(RBb, 4), vaddr, sr(sWS, 4), s16))
                if partial:
                    E('s_mov_b64 exec, -1')
            poll(loads, lambda: check(list(range(RA, RA + 8)), vTg, vAcc))
            quad_reduce(RA, RBb)

        def xpush(sbase, sbase4, vT2):
            E('v_and_or_b32 v%d, v%d, s%d, v%d' % (RA, RA, sMsk, vT2))
            E('buffer_store_dword v%d, v%d, %s, s%d offen sc1' % (RA, vXp, sr(sWS, 4), sbase))
            E('buffer_store_dword v%d, v%d, %s, s%d offen sc1' % (RA, vXp, sr(sWS, 4), sbase4))

        vT2 = 119; vRs = 118

        def stats_gather(k):
            E('s_add_u32 s%d, s%d, %d' % (sT2, sSTb, 8192 * k))
            settag(28, 0)

            def loads():
                for n, off in enumerate((0, 512, 16, 528)):
                    E('buffer_load_dword v%d, v%d, %s, s%d offen offset:%d sc1' % (24 + n, vSTr, sr(sWS, 4), sT2, off))
            poll(loads, lambda: check([24, 25, 26, 27], 28, vAcc))
            E('v_add_f32 v24, v24, v25\nv_add_f32 v26, v26, v27')
            allred_dpp('v_add_f32', 24); allred_dpp('v_add_f32', 26)
            allred_rows('v_add_f32', 24, 25); allred_rows('v_add_f32', 26, 27)
            E('v_mul_f32 v24, 0x%x, v24' % f32(1 / 512.))
            E('v_mul_f32 v25, v24, v24\nv_mov_b32 v27, 0x%x\nv_fma_f32 v24, v26, v27, -v25' % f32(1 / 512.))
            E('v_max_f32 v24, 0, v24\nv_add_f32 v24, 0x%x, v24' % f32(1e-5))

        set_mask(sMb, 0x0000FFFFFFFFFFFF)

        def ffn_half(layer):
            settag(vTg, 1 + 4 * layer); settag(vT2, layer)
            E('s_barrier')
            stamp('A_a%d' % layer)
            red_gather(vRgPull, sR0, sR16pull)
            xpush(sXAo, sXA4, vT2)
            stamp('A_x%d' % (2 * layer + 1))
            E('s_barrier')
            if maybe_stop('XA%d' % layer):
                return True
            stats_gather(2 * layer)
            E('v_rcp_f32 v%d, v24' % vRs)
            settag(vTg, 3 + 4 * layer)
            for k in range(4):
                E('v_mov_b32 v%d, v%d' % (RBb + k, vTg))
            E('s_barrier')
            stamp('A_c%d' % layer)
            red_gather(vRgPull, sR0, sR16pull, partial=True)
            E('v_mul_f32 v%d, v%d, v%d' % (RA, RA, vRs))
            if layer == 0:
                xpush(sXBo, sXB4, vT2)
            else:
                E('v_and_or_b32 v%d, v%d, s%d, v%d' % (RA, RA, sMsk, vT2))
                E('s_mov_b64 exec, %s' % sr(sMN4, 2))
                E('buffer_store_dword v%d, v%d, %s, s%d offen sc1' % (RA, vXpF, sr(sWS, 4), sXBo))
                E('s_mov_b64 exec, -1')
            stamp('A_x%d' % (2 * layer + 2))
            E('s_barrier')
            return False

        if not ffn_half(0) and not maybe_stop('XB0'):
            settag(vTg, 4)
            E('s_barrier')
            stamp('A_e')
            red_gather(vRgPush, sR0, sR16push)
            E('v_mov_b32 v17, v16\nv_permlane16_swap_b32 v16, v17\nv_cvt_pk_bf16_f32 v16, v16, v17\nv_min_u32 v16, -2, v16')
            E('s_mov_b64 exec, %s' % sr(sMa, 2))
            lstore(['buffer_store_dword v16, v%d, %s, s%d offen' % (vQSw, sr(sWS, 4), sQ1)])
            E('s_mov_b64 exec, -1')
            stamp('A_q1')
            stats_gather(1)
            E('v_rsq_f32 v24, v24\nv_mul_f32 v24, 0x%x, v24\nv_readlane_b32 s%d, v24, s%d' % (f32(SCALE), sSig, sB))
            E('s_lshl_b32 s%d, s%d, 10\ns_add_u32 s%d, s%d, s%d' % (sT2, sB, sT2, sT2, sQ1))
            settag(vTg, 1)

            def qloads():
                for c in range(4):
                    E('buffer_load_dwordx4 %s, v%d, %s, s%d offen offset:%d sc1' % (vr(QF + 4 * c, 4), vQf, sr(sWS, 4), sT2, 64 * c))
            poll(qloads, lambda: check_sent(list(range(QF, QF + 16)), vAcc))
            stamp('A_qg')
            if not maybe_stop('QS1'):
                scores_softmax(2)
                E('s_waitcnt lgkmcnt(0)')
                E('s_barrier')
                stamp('A_b6')
                PFb = [16, 64]
                for t in range(4):
                    E('ds_read_b128 %s, v%d offset:%d' % (vr(PFb[0] + 4 * t, 4), vPXr, t * 64))
                for s in coef_reads():
                    E(s)
                co = coef_ops()
                fill = []
                for wp in range(4):
                    pf = PFb[wp & 1]
                    nxt = []
                    if wp < 3:
                        nxt = ['ds_read_b128 %s, v%d offset:%d' % (vr(PFb[(wp + 1) & 1] + 4 * t, 4), vPXr, (wp + 1) * 1024 + t * 64) for t in range(4)]
                    if wp == 0:
                        E('s_waitcnt lgkmcnt(4)')
                    else:
                        E('s_waitcnt lgkmcnt(0)')
                    k = 0
                    for t in range(4):
                        for e in range(2):
                            E('v_mfma_f32_16x16x32_bf16 %s, %s, %s, %s' % (vr(acc(wp, e), 4), vr(fragreg[(wp, t, e)], 4), vr(pf + 4 * t, 4), '0' if t == 0 else vr(acc(wp, e), 4)))
                            k += 1
                            if wp == 0 and k == 1:
                                E('s_waitcnt lgkmcnt(0)')
                                fill = list(co)
                            if k >= 2 and nxt:
                                E(nxt.pop(0))
                            for _ in range(2):
                                if fill:
                                    E(fill.pop(0))
                    if wp == 1:
                        while fill:
                            E(fill.pop(0))
                        fill = fin_ops(0)
                    elif wp == 2:
                        fill = fill + fin_ops(1) + fin_ops(2)
                while fill:
                    E(fill.pop(0))
                for s in fin_ops(3):
                    E(s)
                stamp('A_pv2')
                publish_O()
                E('s_barrier')
                if not maybe_stop('OS1'):
                    ffn_half(1)
        finish_wave()

    E('L_B:')
    E('s_setprio 3')
    WQ, WG, WO, WD = 128, 144, 160, 176
    XRES, ACT = 208, 212
    DA = 216
    vW4 = 2
    E('v_lshrrev_b32 v12, 4, v1\nv_and_b32 v13, 15, v1\nv_and_b32 v14, 3, v1')
    E('v_lshlrev_b32 v3, 4, v13\nv_lshl_add_u32 v2, v12, 13, v3')
    E('v_lshl_add_u32 v4, v12, 10, v3')
    E('v_lshrrev_b32 v5, 3, v1\nv_and_b32 v6, 7, v1\nv_mul_u32_u24 v5, 3584, v5\nv_lshl_add_u32 v5, v6, 4, v5')
    E('v_lshrrev_b32 v7, 2, v1\nv_lshlrev_b32 v7, 6, v7\nv_lshl_add_u32 v7, v14, 10, v7')
    E('v_lshlrev_b32 v8, 3, v12\nv_lshl_add_u32 v8, v14, 10, v8\ns_lshl_b32 s%d, s%d, 5\nv_add_u32 v8, s%d, v8' % (sT0, sJ, sT0))
    E('s_lshl_b32 s%d, s%d, 12' % (sT3, sW))
    E('v_lshrrev_b32 v9, 5, v1\nv_lshlrev_b32 v9, 15, v9\nv_bfe_u32 v10, v1, 3, 2\nv_lshl_add_u32 v9, v10, 10, v9\nv_lshl_add_u32 v9, v6, 2, v9')
    E('s_lshl_b32 s%d, s%d, 5\ns_lshl_b32 s%d, s%d, 12\ns_add_u32 s%d, s%d, s%d\ns_add_u32 s%d, s%d, %d\nv_mov_b32 v10, -1' % (sT0, sJ, sT1, sX, sT0, sT0, sT1, sT0, sT0, QS))
    E('s_waitcnt lgkmcnt(0)')
    E('s_load_dword s%d, s[26:27], 0' % sE)
    srd(sWS, 26, WS_USED)
    srd(sXs, 4, 4096); srd(sA, 10, 4194304); srd(sBv, 16, 1835008); srd(sC, 18, 1835008)
    skip = E.label('Lk')
    E('s_cmp_lg_u32 s%d, 0\ns_cbranch_scc1 %s' % (sW, skip))
    E('buffer_store_dword v10, v9, %s, s%d offen sc1' % (sr(sWS, 4), sT0))
    E(skip + ':')
    for k in range(4):
        E('buffer_load_dwordx4 %s, v7, %s, 0 offen offset:%d' % (vr(16 + 4 * k, 4), sr(sXs, 4), 16 * k))
    E('buffer_load_dwordx2 v[32:33], v8, %s, 0 offen' % sr(sXs, 4))
    E('s_lshl_b32 s%d, s%d, 17\ns_lshl_b32 s%d, s%d, 10\ns_add_u32 s%d, s%d, s%d\ns_lshl_b32 s%d, s%d, 8\ns_add_u32 s%d, s%d, s%d' % (sT0, sJ, sT1, sX, sT0, sT0, sT1, sT1, sW, sT0, sT0, sT1))
    for i in range(4):
        E('s_add_u32 m0, s%d, %d\ns_add_u32 s%d, s%d, %d' % (sT3, S0 + 1024 * i, sT1, sT0, i * 4 * 8192))
        E('buffer_load_dwordx4 v2, %s, s%d offen %s lds' % (sr(sA, 4), sT1, wpol))
    E('s_mul_i32 s%d, s%d, %d\ns_mul_i32 s%d, s%d, 448\ns_add_u32 s%d, s%d, s%d\ns_lshl_b32 s%d, s%d, 7\ns_add_u32 s%d, s%d, s%d' % (sT0, sJ, 16 * 3584, sT1, sX, sT0, sT0, sT1, sT1, sW, sT0, sT0, sT1))
    set_mask(sM1, 0x0F0F0F0F0F0F0F0F)
    E('s_cmp_eq_u32 s%d, 3\ns_cselect_b64 exec, %s, -1' % (sW, sr(sM1, 2)))
    for mtx in range(2):
        for i in range(2):
            E('s_add_u32 m0, s%d, %d\ns_add_u32 s%d, s%d, %d' % (sT3, S1 + 2048 * mtx + 1024 * i, sT1, sT0, i * 8 * 3584))
            E('buffer_load_dwordx4 v5, %s, s%d offen %s lds' % (sr(sBv if mtx == 0 else sC, 4), sT1, wpol))
    E('s_mov_b64 exec, -1')
    common_consts()
    srd(sOUT, 22, 4096); srd(sDBG, 24, 256); srd(sD, 20, 1835008)
    bPush, bQSw = 100, 101
    reducer_addrs(bPush, None, None, None, bQSw, None, 40)
    bTrW, bTrG, bTrD = 102, 103, 104
    bSPush, bSPull, bXr, bOSr, bLSr, bRG, bSTw, bCSw, bCSr, bCMw, bCMr, bOut, bRDs = range(105, 118)
    bTg, bAcc, bT2, bGW, bL16 = 118, 119, 120, 121, 122
    E('v_bfe_u32 v41, v1, 2, 2')
    E('v_lshlrev_b32 v42, 3, v14\nv_lshl_add_u32 v42, v12, 5, v42')
    E('v_lshl_add_u32 v%d, v41, 8, v42\nv_add_u32 v%d, s%d, v%d' % (bTrW, bTrW, sT3, bTrW))
    E('v_and_b32 v43, 1, v14\nv_lshlrev_b32 v43, 3, v43\nv_lshl_add_u32 v43, v12, 4, v43\nv_lshrrev_b32 v44, 1, v14\nv_lshl_add_u32 v43, v44, 11, v43')
    E('v_lshl_add_u32 v%d, v41, 7, v43\nv_add_u32 v%d, s%d, v%d\nv_add_u32 v%d, %d, v%d' % (bTrG, bTrG, sT3, bTrG, bTrG, S1, bTrG))
    E('v_and_b32 v43, 1, v41\nv_lshlrev_b32 v43, 1, v43\nv_lshrrev_b32 v44, 1, v41\nv_or_b32 v43, v43, v44')
    E('v_lshl_add_u32 v%d, v43, 10, v42\nv_add_u32 v%d, %d, v%d' % (bTrD, bTrD, LDS_WD, bTrD))
    E('v_add_u32 v%d, %d, v%d' % (bTrW, S0, bTrW))
    E('s_lshl_b32 s%d, s%d, 3\nv_add_u32 v43, s%d, v12' % (sT0, sW, sT0))
    E('v_mul_u32_u24 v%d, %d, v43\nv_add_u32 v%d, v%d, v3\ns_lshl_b32 s%d, s%d, 8\nv_add_u32 v%d, s%d, v%d' % (bSPush, RU, bSPush, bSPush, sT1, sJ, bSPush, sT1, bSPush))
    E('s_mul_i32 s%d, s%d, %d\nv_lshl_add_u32 v%d, v43, 8, v3\nv_add_u32 v%d, s%d, v%d' % (sT1, sJ, RU, bSPull, bSPull, sT1, bSPull))
    E('v_lshlrev_b32 v%d, 4, v1\nv_add_u32 v%d, s%d, v%d' % (bRDs, bRDs, sT1, bRDs))
    E('v_lshlrev_b32 v44, 4, v14\nv_lshl_add_u32 v44, v41, 5, v44\nv_lshl_add_u32 v44, v43, 12, v44\ns_lshl_b32 s%d, s%d, 7\nv_add_u32 v%d, s%d, v44' % (sT0, sJ, bCSw, sT0))
    E('v_lshrrev_b32 v44, 2, v1\nv_lshlrev_b32 v44, 7, v44\nv_and_b32 v45, 1, v14\nv_lshl_add_u32 v44, v45, 4, v44\ns_lshl_b32 s%d, s%d, 12\ns_lshl_b32 s%d, s%d, 5\ns_add_u32 s%d, s%d, s%d\nv_add_u32 v%d, s%d, v44' % (sT0, sJ, sT1, sW, sT0, sT0, sT1, bCSr, sT0))
    E('v_lshlrev_b32 v44, 2, v12\nv_lshl_add_u32 v44, v14, 11, v44\ns_lshl_b32 s%d, s%d, 6\ns_lshl_b32 s%d, s%d, 4\ns_add_u32 s%d, s%d, s%d\nv_add_u32 v%d, s%d, v44' % (sT0, sJ, sT1, sW, sT0, sT0, sT1, bCMw, sT0))
    E('s_lshl_b32 s%d, s%d, 9\nv_lshl_add_u32 v%d, v1, 2, s%d' % (sT0, sW, bCMr, sT0))
    E('v_lshlrev_b32 v44, 4, v14\nv_lshl_add_u32 v44, v12, 6, v44\nv_lshl_add_u32 v45, v41, 8, v44')
    E('s_lshl_b32 s%d, s%d, 3\ns_add_u32 s%d, s%d, s%d\ns_lshl_b32 s%d, s%d, 11\nv_add_u32 v%d, s%d, v45' % (sT0, sJ, sT0, sT0, sX, sT0, sT0, bXr, sT0))
    E('s_mul_i32 s%d, s%d, %d\nv_add_u32 v%d, s%d, v45' % (sT1, sJ, RU, bRG, sT1))
    E('v_lshl_add_u32 v44, v14, 3, v41\nv_lshlrev_b32 v45, 4, v12\nv_lshl_add_u32 v45, v44, 6, v45\ns_lshl_b32 s%d, s%d, 11\nv_add_u32 v%d, s%d, v45' % (sT0, sJ, bOSr, sT0))
    E('s_lshl_b32 s%d, s%d, 7\nv_lshl_add_u32 v%d, v44, 2, s%d' % (sT0, sB, bLSr, sT0))
    E('v_lshrrev_b32 v44, 5, v1\nv_lshlrev_b32 v44, 4, v44\nv_lshl_add_u32 v44, v14, 2, v44\ns_lshl_b32 s%d, s%d, 5\nv_add_u32 v%d, s%d, v44' % (sT0, sJ, bSTw, sT0))
    E('v_mov_b32 v%d, v8' % bOut)
    E('s_lshl_b32 s%d, s%d, 5\nv_mov_b32 v%d, s%d\nv_lshlrev_b32 v%d, 4, v1' % (sT0, sX, bGW, sT0, bL16))
    sCSb, sCMb, sR4push = sM2, sM2 + 1, sM3
    E('s_lshl_b32 s%d, s%d, 17\ns_add_u32 s%d, s%d, %d' % (sCSb, sX, sCSb, sCSb, CSA))
    E('s_lshl_b32 s%d, s%d, 12\ns_add_u32 s%d, s%d, %d' % (sCMb, sX, sCMb, sCMb, CM))
    E('s_add_u32 s%d, s%d, %d' % (sR4push, sR0, 4 * RU))

    E('s_waitcnt vmcnt(8)')
    E('v_mov_b32 v34, 0x3f803f80\nv_mov_b32 v35, 0\nv_mov_b32 v36, 0')
    for k in range(16):
        E('v_dot2_f32_bf16 v35, v%d, v34, v35' % (16 + k))
    for k in range(16):
        E('v_dot2_f32_bf16 v36, v%d, v%d, v36' % (16 + k, 16 + k))
    allred_dpp('v_add_f32', 35); allred_rows('v_add_f32', 35, 37)
    allred_dpp('v_add_f32', 36); allred_rows('v_add_f32', 36, 37)
    E('v_mul_f32 v35, 0x%x, v35' % f32(1 / 512.))
    E('v_mul_f32 v37, v35, v35\nv_mov_b32 v38, 0x%x\nv_fma_f32 v36, v36, v38, -v37' % f32(1 / 512.))
    E('v_max_f32 v36, 0, v36\nv_add_f32 v36, 0x%x, v36\nv_rsq_f32 v36, v36\nv_mul_f32 v36, 0x%x, v36' % (f32(1e-5), f32(SCALE)))
    E('v_readlane_b32 s%d, v36, s%d' % (sSig, sB))

    def unpack_x(src):
        E('v_lshlrev_b32 v%d, 16, v%d\nv_and_b32 v%d, 0xffff0000, v%d' % (XRES, src, XRES + 1, src))
        E('v_lshlrev_b32 v%d, 16, v%d\nv_and_b32 v%d, 0xffff0000, v%d' % (XRES + 2, src + 1, XRES + 3, src + 1))
    unpack_x(32)
    for k in range(4):
        E('v_sub_f32 v%d, v%d, v35' % (16 + k, XRES + k))
    E('v_cvt_pk_bf16_f32 v%d, v16, v17\nv_cvt_pk_bf16_f32 v%d, v18, v19' % (ACT, ACT + 1))

    def wreg(W, t, k):
        return W + 8 * t + 2 * k

    def tr_std(W, base_off):
        for t in range(2):
            for k in range(4):
                E('ds_read_b64_tr_b16 %s, v%d offset:%d' % (vr(wreg(W, t, k), 2), bTrW, base_off + 1024 * k + 128 * t))

    def gemv16(W, act, d0):
        for k in range(4):
            for t in range(2):
                E('v_mfma_f32_4x4x4_16b_bf16 %s, %s, %s, %s blgp:%d' % (vr(d0 + 4 * t, 4), vr(wreg(W, t, k), 2), vr(act, 2), '0' if k == 0 else vr(d0 + 4 * t, 4), 4 + k))

    def push_stores(d0, second=True):
        o = ['buffer_store_dwordx4 %s, v%d, %s, s%d offen' % (vr(d0, 4), bSPush, sr(sWS, 4), sR0)]
        if second:
            o.append('buffer_store_dwordx4 %s, v%d, %s, s%d offen' % (vr(d0 + 4, 4), bSPush, sr(sWS, 4), sR4push))
        return o

    E('s_waitcnt vmcnt(4) lgkmcnt(0)')
    stamp('B_wq')
    tr_std(WQ, 0)
    settag(bTg, 0)
    E('s_waitcnt lgkmcnt(0)')
    gemv16(WQ, ACT, DA)
    tag(range(DA, DA + 8), bTg)
    lstore(push_stores(DA), always_sc1=True)
    E('s_waitcnt vmcnt(2)')
    for t in range(2):
        for k in range(4):
            E('ds_read_b64_tr_b16 %s, v%d offset:%d' % (vr(wreg(WG, t, k), 2), bTrG, 512 * k + 64 * t))
    E('v_mov_b32 v20, 0x3f803f80\nv_mov_b32 v21, 0x3f803f80')
    gemv16(WQ, 20, DA + 8)
    E('s_waitcnt lgkmcnt(0)')
    gemv16(WG, 20, DA + 16)
    set_mask(sM1, 0x2222222222222222)
    for k in range(8):
        E('v_cndmask_b32 v%d, v%d, v%d, %s' % (DA + 8 + k, DA + 8 + k, DA + 16 + k, sr(sM1, 2)))
    tag(range(DA + 8, DA + 16), bTg)
    set_mask(sM1, 0x3333333333333333)
    E('s_add_u32 s%d, s%d, 16384' % (sT2, sCSb))
    E('s_mov_b64 exec, %s' % sr(sM1, 2))
    E('buffer_store_dwordx4 %s, v%d, %s, s%d offen sc1' % (vr(DA + 8, 4), bCSw, sr(sWS, 4), sCSb))
    E('buffer_store_dwordx4 %s, v%d, %s, s%d offen sc1' % (vr(DA + 12, 4), bCSw, sr(sWS, 4), sT2))
    E('s_mov_b64 exec, -1')
    E('s_getreg_b32 s%d, hwreg(HW_REG_XCC_ID, 0, 4)\ns_and_b32 s%d, s%d, 7\ns_lshl_b32 s%d, s%d, 3' % (sT0, sT0, sT0, sT0, sT0))
    E('s_mov_b64 s[100:101], 1\ns_lshl_b64 s[100:101], s[100:101], s%d' % sT0)
    skip = E.label('Lk')
    E('s_cmp_lg_u32 s%d, 0\ns_cbranch_scc1 %s' % (sW, skip))
    E('v_mov_b32 v22, s100\nv_mov_b32 v23, s101')
    E('s_mov_b64 exec, 1\nbuffer_atomic_add_x2 v[22:23], v%d, %s, 0 offen\ns_mov_b64 exec, -1' % (bGW, sr(sDBG, 4)))
    E(skip + ':')
    stamp('B_rq0')

    RES = DA + 16

    def alpha(gw):
        def l_a(b):
            if gw:
                E('s_mov_b64 exec, 1\nbuffer_load_dwordx2 %s, v%d, %s, 0 offen sc1\ns_mov_b64 exec, -1' % (vr(b + 8, 2), bGW, sr(sDBG, 4)))
            E('buffer_load_dwordx4 %s, v%d, %s, s%d offen sc1' % (vr(b, 4), bPush, sr(sWS, 4), sR0))
            E('buffer_load_dwordx4 %s, v%d, %s, s%d offen sc1' % (vr(b + 4, 4), bPush, sr(sWS, 4), sR16push))

        def c_a(b):
            check(list(range(b, b + 8)), bTg, bAcc)
            if gw:
                E('s_mov_b64 %s, vcc\ns_mov_b64 exec, 1' % sr(sM1, 2))
                E('v_sad_u8 v%d, v%d, 0, 0\nv_sad_u8 v%d, v%d, 0, v%d\nv_cmp_ne_u32 vcc, 32, v%d' % (bAcc, b + 8, bAcc, b + 9, bAcc, bAcc))
                E('s_mov_b64 exec, -1\ns_or_b64 vcc, vcc, %s' % sr(sM1, 2))
        poll_pipe(3 if gw else 2, 10 if gw else 8, 16, l_a, c_a, RES, 12, 2, afirst, agap)
    w0 = E.label('Lw'); join = E.label('Lj')
    E('s_cmp_eq_u32 s%d, 0\ns_cbranch_scc1 %s' % (sW, w0))
    alpha(False)
    E('s_branch %s' % join)
    E(w0 + ':')
    alpha(True)
    E('v_readfirstlane_b32 s%d, v%d\nv_readfirstlane_b32 s%d, v%d' % (sT0, RES + 8, sT1, RES + 9))
    E('s_lshl_b64 s[100:101], s[100:101], 5')
    E('s_xor_b32 s%d, s%d, s100\ns_xor_b32 s%d, s%d, s101\ns_or_b32 s%d, s%d, s%d\ns_cmp_eq_u32 s%d, 0\ns_cselect_b32 s%d, 1, 0' % (sT0, sT0, sT1, sT1, sT0, sT0, sT1, sT0, sMode))
    if force_slow:
        E('s_mov_b32 s%d, 0' % sMode)
    E(join + ':')
    quad_reduce(RES, RES + 4)
    E('v_mov_b32 v%d, v%d\nv_permlane16_swap_b32 v%d, v%d\nv_cvt_pk_bf16_f32 v%d, v%d, v%d\nv_min_u32 v%d, -2, v%d' % (RES + 1, RES, RES, RES + 1, RES, RES, RES + 1, RES, RES))
    E('s_mov_b64 exec, %s' % sr(sMa, 2))
    E('buffer_store_dword v%d, v%d, %s, s%d offen sc1' % (RES, bQSw, sr(sWS, 4), sQ0))
    E('s_mov_b64 exec, -1')
    stamp('B_q0')

    def wo_wd_loads():
        srd(sA, 12, 4194304)
        E('s_lshl_b32 s%d, s%d, 19\ns_lshl_b32 s%d, s%d, 14\ns_add_u32 s%d, s%d, s%d\ns_lshl_b32 s%d, s%d, 8\ns_add_u32 s%d, s%d, s%d' % (sT0, sX, sT1, sJ, sT0, sT0, sT1, sT1, sW, sT0, sT0, sT1))
        for i in range(4):
            E('s_add_u32 m0, s%d, %d\ns_add_u32 s%d, s%d, %d' % (sT3, S1 + 1024 * i, sT1, sT0, i * 4096))
            E('buffer_load_dwordx4 v4, %s, s%d offen %s lds' % (sr(sA, 4), sT1, wpol))
        skip = E.label('Lk')
        E('s_cmp_lg_u32 s%d, 3\ns_cbranch_scc1 %s\ns_cmp_ge_u32 s%d, 28\ns_cbranch_scc1 %s' % (sW, skip, sJ, skip))
        E('s_mul_i32 s%d, s%d, %d\ns_lshl_b32 s%d, s%d, 13\ns_add_u32 s%d, s%d, s%d' % (sT0, sX, 224 * 1024, sT1, sJ, sT0, sT0, sT1))
        for i in range(8):
            E('s_mov_b32 m0, %d\ns_add_u32 s%d, s%d, %d' % (LDS_WD + 1024 * i, sT1, sT0, i * 1024))
            E('buffer_load_dwordx4 v%d, %s, s%d offen %s lds' % (bL16, sr(sD, 4), sT1, wpol))
        E(skip + ':')

    if not late:
        wo_wd_loads()
    CSR = 64
    sCS2 = sM3 + 1
    E('s_add_u32 s%d, s%d, 2048' % (sCS2, sCSb))

    def l_cs():
        E('buffer_load_dwordx4 %s, v%d, %s, s%d offen sc1' % (vr(CSR, 4), bCSr, sr(sWS, 4), sCSb))
        E('buffer_load_dwordx4 %s, v%d, %s, s%d offen sc1' % (vr(CSR + 4, 4), bCSr, sr(sWS, 4), sCS2))
    l_cs()
    skip = E.label('Lk')
    E('s_cmp_lg_u32 s%d, 0\ns_cbranch_scc1 %s' % (sW, skip))
    E('s_lshl_b32 s%d, s%d, 10\ns_add_u32 s%d, s%d, s%d' % (sT2, sB, sT2, sT2, sQ0))
    poll_pipe(1, 4, 40, lambda b: E('buffer_load_dwordx4 %s, v%d, %s, s%d offen sc1' % (vr(b, 4), bL16, sr(sWS, 4), sT2)),
              lambda b: check_sent(list(range(b, b + 4)), bAcc), RES, 4, 5, bfirst, bgap)
    E('v_add_u32 v9, %d, v%d\nds_write_b128 v9, %s' % (LDS_Q, bL16, vr(RES, 4)))
    E('v_mov_b32 v9, %d\nv_mov_b32 v10, s%d\nv_mov_b32 v11, s%d\nds_write_b64 v9, v[10:11]' % (LDS_SIG, sSig, sMode))
    stamp('B_qg0')
    E(skip + ':')
    ok = E.label('Lo')
    E('s_cmp_lg_u32 s%d, 0\ns_cbranch_scc0 %s\ns_waitcnt vmcnt(0)\n%s:' % (sW, ok, ok))
    check(list(range(CSR, CSR + 8)), bTg, bAcc)
    ok = E.label('Lo')
    E('s_cbranch_vccz %s' % ok)
    poll(l_cs, lambda: check(list(range(CSR, CSR + 8)), bTg, bAcc))
    E(ok + ':')
    quad_reduce(CSR, CSR + 4)
    E('v_mul_f32 v%d, 0x%x, v%d' % (CSR, f32(1 / 512.), CSR))
    tag([CSR], bTg)
    set_mask(sM1, 0x0003000300030003)
    E('s_mov_b64 exec, %s' % sr(sM1, 2))
    E('buffer_store_dword v%d, v%d, %s, s%d offen sc1' % (CSR, bCMw, sr(sWS, 4), sCMb))
    E('s_mov_b64 exec, -1')

    def centre():
        settag(bTg, 0)

        def l_cm():
            for n, off in enumerate((0, 256, 2048, 2304)):
                E('buffer_load_dword v%d, v%d, %s, s%d offen offset:%d sc1' % (16 + n, bCMr, sr(sWS, 4), sCMb, off))
        poll(l_cm, lambda: check([16, 17, 18, 19], bTg, bAcc))
        for n, W in ((1, WG), (0, WQ)):
            for t in range(2):
                cmr = 16 + 2 * n + t
                for k in range(4):
                    for hh in range(2):
                        r = wreg(W, t, k) + hh
                        E('v_lshlrev_b32 v124, 16, v%d\nv_and_b32 v125, 0xffff0000, v%d' % (r, r))
                        E('v_sub_f32 v124, v124, v%d\nv_sub_f32 v125, v125, v%d\nv_cvt_pk_bf16_f32 v%d, v124, v125' % (cmr, cmr, r))
        stamp('B_ctr')
    E('s_waitcnt lgkmcnt(0)')
    stamp('B_init')
    E('s_barrier')
    E('v_mov_b32 v9, %d\nds_read_b32 v10, v9 offset:4\ns_waitcnt lgkmcnt(0)\nv_readfirstlane_b32 s%d, v10' % (LDS_SIG, sMode))
    if late:
        wo_wd_loads()
    for _ in range(4):
        E('s_barrier')
    E('s_waitcnt vmcnt(0)')
    tr_std(WO, S1 - S0)
    skip = E.label('Lk')
    E('s_cmp_lg_u32 s%d, 3\ns_cbranch_scc1 %s' % (sW, skip))
    for t in range(8):
        for q in range(2):
            E('ds_read_b64_tr_b16 %s, v%d offset:%d' % (vr(WD + 4 * t + 2 * q, 2), bTrD, 4096 * q + 128 * t))
    E(skip + ':')
    E('s_waitcnt lgkmcnt(0)')
    stamp('B_w')

    def oproj(layer):
        settag(bTg, layer); settag(bT2, 1 + 4 * layer)
        E('s_barrier')
        stamp('B_f%d' % layer)
        if stop == 'OS%d' % layer:
            return True

        def loads():
            E('buffer_load_dword v24, v%d, %s, s%d offen sc1\nbuffer_load_dword v25, v%d, %s, s%d offen offset:16 sc1' % (bLSr, sr(sWS, 4), sLSb, bLSr, sr(sWS, 4), sLSb))
            E('buffer_load_dwordx4 v[16:19], v%d, %s, s%d offen sc1\nbuffer_load_dwordx4 v[20:23], v%d, %s, s%d offen offset:256 sc1' % (bOSr, sr(sWS, 4), sOSb, bOSr, sr(sWS, 4), sOSb))
        poll(loads, lambda: check(list(range(16, 26)), bTg, bAcc))
        stamp('B_og%d' % layer)
        E('v_max_f32 v26, v24, v25')
        allred_dpp('v_max_f32', 26)
        E('v_sub_f32 v24, v24, v26\nv_sub_f32 v25, v25, v26\nv_exp_f32 v24, v24\nv_exp_f32 v25, v25')
        for k in range(4):
            E('v_mul_f32 v%d, v24, v%d' % (16 + k, 16 + k))
        E('v_add_f32 v26, v24, v25')
        for k in range(4):
            E('v_fmac_f32 v%d, v25, v%d' % (16 + k, 20 + k))
        for ro in (4, 8):
            E('v_add_f32_dpp v26, v26, v26 row_ror:%d %s' % (ro, DPPM))
            for k in range(4):
                E('v_add_f32_dpp v%d, v%d, v%d row_ror:%d %s' % (16 + k, 16 + k, 16 + k, ro, DPPM))
        E('v_rcp_f32 v26, v26')
        for k in range(4):
            E('v_mul_f32 v%d, v%d, v26' % (16 + k, 16 + k))
        E('v_cvt_pk_bf16_f32 v%d, v16, v17\nv_cvt_pk_bf16_f32 v%d, v18, v19' % (ACT, ACT + 1))
        gemv16(WO, ACT, DA)
        tag(range(DA, DA + 8), bT2)
        lstore(['buffer_store_dwordx4 %s, v%d, %s, s%d offen' % (vr(DA, 4), bSPull, sr(sWS, 4), sR0),
                'buffer_store_dwordx4 %s, v%d, %s, s%d offen offset:1024' % (vr(DA + 4, 4), bSPull, sr(sWS, 4), sR0)])
        stamp('B_ro%d' % layer)
        E('s_barrier')
        if layer == 0:
            centre()
        return False

    def xr(sbase):
        if xdelay:
            E('s_sleep %d' % xdelay)

        def loads():
            E('buffer_load_dwordx4 v[16:19], v%d, %s, s%d offen sc1\nbuffer_load_dwordx4 v[20:23], v%d, %s, s%d offen offset:1024 sc1' % (bXr, sr(sWS, 4), sbase, bXr, sr(sWS, 4), sbase))
        poll(loads, lambda: check(list(range(16, 24)), bTg, bAcc))
        for k in range(4):
            E('v_add_f32 v%d, v%d, v%d' % (16 + k, 16 + k, 20 + k))
        for ro in (4, 8):
            for k in range(4):
                E('v_add_f32_dpp v%d, v%d, v%d row_ror:%d %s' % (16 + k, 16 + k, 16 + k, ro, DPPM))
        for k in range(4):
            E('v_add_f32 v%d, v%d, v%d' % (16 + k, 16 + k, XRES + k))
        E('v_cvt_pk_bf16_f32 v%d, v16, v17\nv_cvt_pk_bf16_f32 v%d, v18, v19' % (ACT, ACT + 1))

    def publish_stats(k):
        unpack_x(ACT)
        skip = E.label('Lk')
        E('s_cmp_lg_u32 s%d, 2\ns_cbranch_scc1 %s' % (sW, skip))
        E('v_add_f32 v30, v%d, v%d\nv_add_f32 v31, v%d, v%d\nv_add_f32 v30, v30, v31' % (XRES, XRES + 1, XRES + 2, XRES + 3))
        E('v_mul_f32 v31, v%d, v%d' % (XRES, XRES))
        for q in range(1, 4):
            E('v_fmac_f32 v31, v%d, v%d' % (XRES + q, XRES + q))
        E('v_permlane32_swap_b32 v30, v31\nv_add_f32 v30, v30, v31\nv_mov_b32 v31, v30\nv_permlane16_swap_b32 v30, v31\nv_add_f32 v30, v30, v31')
        settag(31, 0)
        tag([30], 31)
        E('s_add_u32 s%d, s%d, %d' % (sT2, sSTb, 8192 * k))
        E('s_mov_b64 exec, %s' % sr(sMa, 2))
        lstore(['buffer_store_dword v30, v%d, %s, s%d offen' % (bSTw, sr(sWS, 4), sT2)])
        E('s_mov_b64 exec, -1')
        E(skip + ':')

    def ffn(layer):
        settag(bTg, layer); settag(bT2, 2 + 4 * layer)
        E('s_barrier')
        if stop == 'XA%d' % layer:
            return True
        xr(sXAo)
        stamp('B_xr%d' % (2 * layer + 1))
        gemv16(WG, ACT, DA)
        tag(range(DA, DA + 8), bT2)
        w3 = E.label('Lw'); join = E.label('Lj')
        E('s_cmp_eq_u32 s%d, 3\ns_cbranch_scc1 %s' % (sW, w3))
        lstore(push_stores(DA))
        publish_stats(2 * layer)
        E('s_branch %s' % join)
        E(w3 + ':')
        lstore(push_stores(DA, second=False))
        stamp('B_rg%d' % layer)
        unpack_x(ACT)
        E('s_cmp_ge_u32 s%d, 28\ns_cbranch_scc1 %s' % (sJ, join))
        settag(bTg, 3 + 4 * layer)

        def loads():
            for i in range(8):
                E('buffer_load_dwordx4 %s, v%d, %s, s%d offen offset:%d sc1' % (vr(16 + 4 * i, 4), bRG, sr(sWS, 4), sR0 if i < 4 else sR16push, 1024 * (i & 3)))
        poll(loads, lambda: check([16 + 4 * i for i in range(8)], bT2, bAcc))
        stamp('B_gg%d' % layer)
        for st in (16, 8, 4):
            for i in range(st):
                E('v_add_f32 v%d, v%d, v%d' % (16 + i, 16 + i, 16 + st + i))
        for ro in (4, 8):
            for k in range(4):
                E('v_add_f32_dpp v%d, v%d, v%d row_ror:%d %s' % (16 + k, 16 + k, 16 + k, ro, DPPM))
        E('v_permlane32_swap_b32 v16, v17\nv_permlane32_swap_b32 v18, v19')
        E('v_max_f32 v16, 0, v16\nv_max_f32 v18, 0, v18\nv_mul_f32 v16, v16, v17\nv_mul_f32 v18, v18, v19')
        E('v_cvt_pk_bf16_f32 v20, v16, v18\nv_mov_b32 v21, v20\nv_permlane32_swap_b32 v20, v21')
        for q in range(2):
            for t in range(8):
                E('v_mfma_f32_4x4x4_16b_bf16 %s, %s, v[20:21], %s blgp:%d' % (vr(DA + 4 * t, 4), vr(WD + 4 * t + 2 * q, 2), '0' if q == 0 else vr(DA + 4 * t, 4), 4 + q))
        tag(range(DA, DA + 32), bTg)
        lstore(['buffer_store_dwordx4 %s, v%d, %s, s%d offen offset:%d' % (vr(DA + 4 * t, 4), bRDs, sr(sWS, 4), sR0 if t < 4 else sR16push, 1024 * (t & 3)) for t in range(8)])
        stamp('B_rd%d' % layer)
        E(join + ':')
        E('s_barrier')
        return False

    done = oproj(0) or ffn(0)
    if not done:
        settag(bTg, 0); settag(bT2, 4)
        E('s_barrier')
        if stop != 'XB0':
            xr(sXBo)
            stamp('B_xr2')
            gemv16(WQ, ACT, DA)
            tag(range(DA, DA + 8), bT2)
            lstore(push_stores(DA))
            publish_stats(1)
            E('s_barrier')
            if stop != 'QS1':
                E('s_barrier')
                if not (oproj(1) or ffn(1)):
                    settag(bTg, 1)
                    E('s_barrier')
                    E('s_and_b32 s%d, s%d, 7\ns_cmp_lg_u32 s%d, s%d\ns_cbranch_scc1 L_exit' % (sT0, sJ, sT0, sX))
                    E('s_cmp_lg_u32 s%d, 0\ns_cbranch_scc1 L_exit' % sW)
                    xr(sXBo)
                    E('s_mov_b64 exec, %s' % sr(sMN4, 2))
                    E('buffer_store_dwordx2 %s, v%d, %s, 0 offen' % (vr(ACT, 2), bOut, sr(sOUT, 4)))
                    E('s_mov_b64 exec, -1')
                    stamp('B_out')
                    E('s_cmp_lg_u32 s2, 0\ns_cbranch_scc1 L_exit')
                    E('s_add_u32 s%d, s%d, 16\nv_mov_b32 v16, s%d\nv_mov_b32 v17, 0\ns_mov_b64 exec, 1' % (sT0, sE, sT0))
                    E('buffer_store_dword v16, v17, %s, 0 offen\ns_mov_b64 exec, -1' % sr(sWS, 4))
    E('s_branch L_exit')

    for s in stubs:
        E(s)
    E('L_fail:')
    if stamps:
        E('s_mov_b64 exec, -1\nv_writelane_b32 v%d, -1, 63' % vStamp)
    E('L_exit:')
    if stamps:
        E('s_mov_b64 exec, -1')
        E('s_lshl_b32 s%d, s2, 3\ns_add_u32 s%d, s%d, s%d\ns_lshl_b32 s%d, s%d, 8' % (sT0, sT0, sT0, sWave, sT0, sT0))
        E('s_add_u32 s4, s26, s%d\ns_addc_u32 s5, s27, 0\ns_add_u32 s4, s4, 0x%x\ns_addc_u32 s5, s5, 0' % (sT0, STAMP))
        E('v_lshlrev_b32 v16, 2, v1\nglobal_store_dword v16, v%d, s[4:5]' % vStamp)
    E('L_end:')
    E('s_endpgm')

    body = E.finish()
    ref = open('cdna_kernels/%s.s.ref' % KNAME).read().split('\n')
    hdr = [l for l in ref if l.startswith(';') and '@launch' not in l][:16]
    txt = '\n'.join(hdr) + '\n; @launch grid=(256,1,1) block=(512,1,1) lds=%d\n' % LDS_TOTAL
    txt += '.amdgcn_target "amdgcn-amd-amdhsa--gfx950"\n.text\n.globl %s_kernel\n.p2align 8\n.type %s_kernel,@function\n%s_kernel:\n' % (KNAME, KNAME, KNAME)
    txt += body
    txt += '''.section .rodata,"a"
.p2align 6
.amdhsa_kernel %s_kernel
  .amdhsa_next_free_vgpr 256
  .amdhsa_next_free_sgpr 102
  .amdhsa_accum_offset 256
  .amdhsa_group_segment_fixed_size 0
  .amdhsa_kernarg_size 96
  .amdhsa_user_sgpr_count 2
  .amdhsa_user_sgpr_kernarg_segment_ptr 1
  .amdhsa_system_sgpr_workgroup_id_x 1
.end_amdhsa_kernel
''' % KNAME
    return txt, stamp_names


if __name__ == '__main__':
    import argparse, json
    ap = argparse.ArgumentParser()
    ap.add_argument('-o', default='cdna_kernels/%s.s' % KNAME)
    ap.add_argument('--stop', default=None)
    ap.add_argument('--stamps', action='store_true')
    ap.add_argument('--opt', action='append', default=[])
    a = ap.parse_args()
    kw = {}
    for o in a.opt:
        k, v = o.split('=')
        try:
            v = int(v)
        except ValueError:
            pass
        kw[k] = v
    txt, names = build(stop=a.stop, stamps=a.stamps, **kw)
    open(a.o, 'w').write(txt)
    if a.stamps:
        json.dump(names, open(a.o + '.json', 'w'))
    print('wrote', a.o, len(txt), 'bytes', txt.count('\n'), 'lines')
```

```python
import sys, struct, os
sys.path.insert(0, os.path.dirname(os.path.abspath(__file__)))
from emit import Emitter

KNAME = 'interleave_layers__sliding_block_cached__glu_gated_reglu__decode'

QS = 0x10000
ST = 0x20000
CM = 0x28000
LS = 0x30000
OS = 0x80000
CSA = 0x100000
RB = 0x200000
RU = 8448
RX = 32 * RU
XA = 0x480000
XB = 0x500000
WS_USED = 0x580000
STAMP = 0x10000000

S0 = 131072
S1 = S0 + 16384
LDS_WD = S0
LDS_Q = S0 + 8192
LDS_SIG = S0 + 9216
LDS_PX = S0 + 10240
LDS_ML = S0 + 14336
LDS_TOTAL = 163840


def f32(x):
    return struct.unpack('<I', struct.pack('<f', x))[0]


LOG2E = 1.4426950408889634
SCALE = (128 ** -0.5) * LOG2E


def vr(a, n=1):
    return 'v%d' % a if n == 1 else 'v[%d:%d]' % (a, a + n - 1)


def sr(a, n=1):
    return 's%d' % a if n == 1 else 's[%d:%d]' % (a, a + n - 1)


DPPM = 'row_mask:0xf bank_mask:0xf'


def build(stop=None, stamps=False, dbgst=None, late=True, rot=37, xdelay=0, force_slow=False, kvpol='nt', wpol='nt', afirst=30, agap=30, bfirst=12, bgap=14):
    E = Emitter()
    stubs = []

    sWS = 28; sA = 32; sBv = 36; sC = 40; sD = 44; sXs = 48; sOUT = 52; sDBG = 56
    sX, sJ, sB, sW, sE, sMode = 60, 61, 62, 63, 64, 65
    sT0, sT1, sT2, sT3, sCnt, sSig = 66, 67, 68, 69, 70, 71
    sR0, sR16push, sR16pull, sOSb, sLSb, sQ0, sQ1, sXAo, sXBo = 72, 73, 74, 75, 76, 77, 78, 79, 80
    sSTb, sMsk, sWave = 81, 82, 83
    sM1, sM2, sM3, sMN4 = 84, 86, 88, 90
    sMa, sMb = 92, 94
    sTm = 96
    sXA4, sXB4 = 98, 99
    vL = 1
    vStamp = 15

    nst = [0]
    stamp_names = {}

    def stamp(name):
        if not stamps:
            return
        if dbgst:
            if name not in dbgst and name != 'start':
                return
            idx = 0 if name == 'start' else [2, 3, 4, 5, 6, 7, 10, 11, 12, 13, 14, 15][dbgst.index(name)]
            stamp_names[name] = idx
        else:
            idx = stamp_names.setdefault(name, len(stamp_names))
        E('s_memrealtime s[96:97]\ns_waitcnt lgkmcnt(0)\nv_writelane_b32 v%d, s96, %d' % (vStamp, idx))

    def set_mask(s, val):
        E('s_mov_b32 %s, 0x%x\ns_mov_b32 %s, 0x%x' % (sr(s), val & 0xffffffff, sr(s + 1), val >> 32))

    def srd(d, lo, size):
        E('s_mov_b32 s%d, s%d\ns_mov_b32 s%d, s%d\ns_mov_b32 s%d, %d\ns_mov_b32 s%d, 0x20000' % (d, lo, d + 1, lo + 1, d + 2, size, d + 3))

    def settag(v, u):
        E('s_add_u32 s%d, s%d, %d\ns_and_b32 s%d, s%d, 0xff\nv_mov_b32 v%d, s%d' % (sT0, sE, 1 + u, sT0, sT0, v, sT0))

    def tag(regs, vT):
        for r in regs:
            E('v_and_or_b32 v%d, v%d, s%d, v%d' % (r, r, sMsk, vT))

    def check(regs, vT, acc):
        E('v_xor_b32 v%d, v%d, v%d' % (acc, regs[0], vT))
        for r in regs[1:]:
            E('v_bitop3_b32 v%d, v%d, v%d, v%d bitop3:0xf6' % (acc, acc, r, vT))
        E('v_and_b32 v%d, 0xff, v%d\nv_cmp_ne_u32 vcc, 0, v%d' % (acc, acc, acc))

    def check_sent(regs, acc):
        E('v_max3_u32 v%d, v%d, v%d, v%d' % (acc, regs[0], regs[1], regs[2]))
        rest = regs[3:]
        while len(rest) >= 2:
            E('v_max3_u32 v%d, v%d, v%d, v%d' % (acc, acc, rest[0], rest[1]))
            rest = rest[2:]
        if rest:
            E('v_max_u32 v%d, v%d, v%d' % (acc, acc, rest[0]))
        E('v_cmp_eq_u32 vcc, -1, v%d' % acc)

    def poll(loads, chk):
        top = E.label('Lp'); stub = E.label('Lr')
        E('s_mov_b32 s%d, 0' % sCnt)
        E(top + ':')
        loads()
        E('s_waitcnt vmcnt(0)')
        chk()
        E('s_cbranch_vccnz %s' % stub)
        stubs.append('%s:\ns_add_u32 s%d, s%d, 1\ns_cmp_lt_u32 s%d, 0x8000\ns_cbranch_scc1 %s\ns_branch L_fail' % (stub, sCnt, sCnt, sCnt, top))

    def poll_pipe(nload, nreg, base, loads, chk, dst, stride, D, first, gap):
        top = E.label('Lq'); done = E.label('Ld')
        oks = [E.label('Lo') for _ in range(D)]
        E('s_mov_b32 s%d, 0' % sCnt)
        if first:
            E('s_sleep %d' % first)
        for d in range(D - 1):
            loads(base + d * stride)
            E('s_sleep %d' % gap)
        E(top + ':')
        for d in range(D):
            loads(base + ((d + D - 1) % D) * stride)
            E('s_waitcnt vmcnt(%d)' % ((D - 1) * nload))
            chk(base + d * stride)
            E('s_cbranch_vccz %s' % oks[d])
        E('s_add_u32 s%d, s%d, 1\ns_cmp_lt_u32 s%d, 0x4000\ns_cbranch_scc1 %s\ns_branch L_fail' % (sCnt, sCnt, sCnt, top))
        for d in range(D):
            E(oks[d] + ':')
            for k in range(nreg):
                E('v_mov_b32 v%d, v%d' % (dst + k, base + d * stride + k))
            if d != D - 1:
                E('s_branch %s' % done)
        E(done + ':')

    def lstore(stores, always_sc1=False):
        if always_sc1:
            for s in stores:
                E(s + ' sc1')
            return
        slow = E.label('Ls'); back = E.label('Lb')
        E('s_cmp_eq_u32 s%d, 0\ns_cbranch_scc1 %s' % (sMode, slow))
        for s in stores:
            E(s)
        E(back + ':')
        stubs.append(slow + ':\n' + '\n'.join(s + ' sc1' for s in stores) + '\ns_nop 1\ns_branch ' + back)

    def allred_dpp(op, r):
        E('%s_dpp v%d, v%d, v%d row_ror:4 %s' % (op, r, r, r, DPPM))
        E('%s_dpp v%d, v%d, v%d row_ror:8 %s' % (op, r, r, r, DPPM))

    def allred_rows(op, r, t):
        E('v_mov_b32 v%d, v%d\nv_permlane16_swap_b32 v%d, v%d\n%s v%d, v%d, v%d' % (t, r, r, t, op, r, r, t))
        E('v_mov_b32 v%d, v%d\nv_permlane32_swap_b32 v%d, v%d\n%s v%d, v%d, v%d' % (t, r, r, t, op, r, r, t))

    def quad_reduce(a, b):
        for k in range(4):
            E('v_add_f32 v%d, v%d, v%d' % (a + k, a + k, b + k))
        E('v_permlane32_swap_b32 v%d, v%d\nv_permlane32_swap_b32 v%d, v%d' % (a, a + 2, a + 1, a + 3))
        E('v_add_f32 v%d, v%d, v%d\nv_add_f32 v%d, v%d, v%d' % (a, a, a + 2, a + 1, a + 1, a + 3))
        E('v_permlane16_swap_b32 v%d, v%d\nv_add_f32 v%d, v%d, v%d' % (a, a + 1, a, a, a + 1))
        allred_dpp('v_add_f32', a)

    def common_consts():
        srd(sWS, 26, WS_USED)
        E('s_mul_i32 s%d, s%d, %d\ns_add_u32 s%d, s%d, %d' % (sR0, sX, RX, sR0, sR0, RB))
        E('s_add_u32 s%d, s%d, 4096\ns_add_u32 s%d, s%d, %d' % (sR16push, sR0, sR16pull, sR0, 16 * RU))
        E('s_lshl_b32 s%d, s%d, 16\ns_add_u32 s%d, s%d, %d' % (sOSb, sX, sOSb, sOSb, OS))
        E('s_lshl_b32 s%d, s%d, 9\ns_add_u32 s%d, s%d, %d' % (sLSb, sX, sLSb, sLSb, LS))
        E('s_lshl_b32 s%d, s%d, 12\ns_add_u32 s%d, s%d, %d\ns_add_u32 s%d, s%d, 32768' % (sQ0, sX, sQ0, sQ0, QS, sQ1, sQ0))
        E('s_lshl_b32 s%d, s%d, 10\ns_add_u32 s%d, s%d, %d' % (sSTb, sX, sSTb, sSTb, ST))
        E('s_mov_b32 s%d, %d\ns_mov_b32 s%d, %d' % (sXAo, XA, sXBo, XB))
        E('s_mov_b32 s%d, %d\ns_mov_b32 s%d, %d' % (sXA4, XA + 8192, sXB4, XB + 8192))
        E('s_mov_b32 s%d, 0xffffff00' % sMsk)
        set_mask(sMN4, 0x000F000F000F000F)
        set_mask(sMa, 0x0000000F0000000F)

    def finish_wave():
        E('s_branch L_exit')

    def maybe_stop(name):
        if stop == name:
            finish_wave()
            return True
        return False

    E('s_cmp_ge_u32 s2, 256\ns_cbranch_scc1 L_end')
    E('s_load_dwordx8 s[4:11], s[0:1], 0\ns_load_dwordx2 s[12:13], s[0:1], 32')
    E('s_load_dwordx8 s[16:23], s[0:1], 48\ns_load_dwordx4 s[24:27], s[0:1], 80')
    E('v_lshrrev_b32 v2, 6, v0\nv_and_b32 v1, 63, v0\nv_readfirstlane_b32 s%d, v2' % sWave)
    E('s_and_b32 s%d, s2, 7\ns_lshr_b32 s%d, s2, 3\ns_lshr_b32 s%d, s2, 6' % (sX, sJ, sB))
    E('s_and_b32 s%d, s%d, 3' % (sW, sWave))
    if stamps:
        E('v_mov_b32 v%d, 0' % vStamp)
    stamp('start')
    E('s_cmp_ge_u32 s%d, 4\ns_cbranch_scc1 L_B' % sWave)

    KR = 128
    vKo = [2, 3, 4, 5]; vVo = [6, 7]; vKr = [8, 9, 10, 11]
    E('v_lshrrev_b32 v12, 4, v1\nv_and_b32 v13, 15, v1')
    E('v_xor_b32 v14, v13, v12\nv_lshlrev_b32 v14, 4, v14\nv_lshl_add_u32 v2, v12, 8, v14')
    for k in range(1, 4):
        E('v_xor_b32 v%d, %d, v2' % (vKo[k], 64 * k))
    E('v_lshlrev_b32 v14, 1, v12\nv_xor_b32 v14, v13, v14\nv_lshlrev_b32 v14, 4, v14\nv_lshl_add_u32 v6, v12, 8, v14')
    E('v_xor_b32 v7, 128, v6')
    E('s_lshl_b32 s%d, s%d, 3\ns_add_u32 s%d, s%d, s%d\ns_lshl_b32 s%d, s%d, 22' % (sT0, sB, sT0, sT0, sX, sT0, sT0))
    E('s_and_b32 s%d, s%d, 7\ns_lshl_b32 s%d, s%d, 17\ns_add_u32 s%d, s%d, s%d\ns_add_u32 s%d, s%d, %d' % (sT1, sJ, sT1, sT1, sT0, sT0, sT1, sT0, sT0, 12288 * 256))
    E('s_mul_i32 s%d, s2, %d\ns_add_u32 s%d, s%d, s%d\ns_and_b32 s%d, s%d, 127\ns_lshl_b32 s%d, s%d, 10' % (sT2, rot, sT2, sT2, sW, sT2, sT2, sT2, sT2))
    E('s_lshl_b32 s%d, s%d, 15' % (sT3, sW))
    E('s_waitcnt lgkmcnt(0)')
    E('s_add_u32 s%d, s6, s%d\ns_addc_u32 s%d, s7, 0\ns_mov_b32 s%d, 131072\ns_mov_b32 s%d, 0x20000' % (sA, sT0, sA + 1, sA + 2, sA + 3))
    E('s_add_u32 s%d, s8, s%d\ns_addc_u32 s%d, s9, 0\ns_mov_b32 s%d, 131072\ns_mov_b32 s%d, 0x20000' % (sBv, sT0, sBv + 1, sBv + 2, sBv + 3))
    E('s_load_dword s%d, s[26:27], 0' % sE)
    sOff = sT1

    def kvload(i, srdn, voff):
        E('s_add_u32 m0, s%d, %d' % (sT3, i * 1024))
        if i == 0:
            E('s_mov_b32 s%d, s%d' % (sOff, sT2))
        else:
            E('s_add_u32 s%d, s%d, 4096\ns_and_b32 s%d, s%d, 0x1ffff' % (sOff, sOff, sOff, sOff))
        E('buffer_load_dwordx4 v%d, %s, s%d offen %s lds' % (voff, sr(srdn, 4), sOff, kvpol))

    for i in range(32):
        kvload(i, sA, vKo[i & 3])
        if i == 11:
            E('v_xor_b32 v14, v12, v13\nv_lshlrev_b32 v14, 4, v14\nv_lshl_add_u32 v8, v13, 8, v14\nv_add_u32 v8, s%d, v8' % sT3)
            for c in range(1, 4):
                E('v_xor_b32 v%d, %d, v8' % (vKr[c], 64 * c))
    for t in range(8):
        E('s_waitcnt vmcnt(28)')
        for c in range(4):
            E('ds_read_b128 %s, v%d offset:%d' % (vr(KR + 16 * t + 4 * c, 4), vKr[c], t * 4096))
        E('s_waitcnt lgkmcnt(0)')
        for i in range(4 * t, 4 * t + 4):
            kvload(i, sBv, vVo[i & 1])
    stamp('A_issued')
    common_consts()
    set_mask(sM1, 0x00F000F000F000F0); set_mask(sM2, 0x0F000F000F000F00); set_mask(sM3, 0xF000F000F000F000)
    vVT = [2, 3, 4, 5]
    vPXw, vPXr, vMLa, vQf, vOSw, vLSw = 6, 7, 8, 9, 10, 11
    vRgPush, vRgPull, vXp, vQSw, vSTr, vXpF = 120, 121, 122, 123, 124, 125
    vTg, vAcc = 126, 127
    E('v_lshrrev_b32 v16, 2, v1')
    E('v_and_b32 v17, 7, v16\nv_lshlrev_b32 v17, 1, v17')
    E('v_bfe_u32 v18, v1, 1, 1\ns_lshl_b32 s%d, s%d, 2\nv_add_u32 v18, s%d, v18' % (sT0, sW, sT0))
    E('v_xor_b32 v18, v18, v17\nv_lshlrev_b32 v18, 4, v18\nv_lshl_add_u32 v18, v16, 8, v18')
    E('v_and_b32 v19, 1, v1\nv_lshl_add_u32 v2, v19, 3, v18')
    E('v_xor_b32 v3, 32, v2\nv_add_u32 v4, 0x10000, v2\nv_add_u32 v5, 0x10000, v3')
    E('s_lshl_b32 s%d, s%d, 10\ns_add_u32 s%d, s%d, %d\nv_lshl_add_u32 v%d, v1, 4, s%d' % (sT0, sW, sT0, sT0, LDS_PX, vPXw, sT0))
    E('v_and_b32 v16, 3, v1\nv_lshl_add_u32 v17, v12, 4, v16\nv_lshlrev_b32 v17, 4, v17\nv_add_u32 v%d, %d, v17' % (vPXr, LDS_PX))
    E('v_lshlrev_b32 v17, 3, v1\nv_add_u32 v%d, %d, v17' % (vMLa, LDS_ML))
    E('v_lshlrev_b32 v17, 8, v16\nv_lshl_add_u32 v%d, v12, 4, v17' % vQf)
    E('v_lshlrev_b32 v17, 14, v16\nv_lshl_add_u32 v17, v12, 4, v17')
    E('s_lshl_b32 s%d, s%d, 12\ns_lshl_b32 s%d, s%d, 6\ns_add_u32 s%d, s%d, s%d\nv_add_u32 v%d, s%d, v17' % (sT0, sW, sT1, sJ, sT0, sT0, sT1, vOSw, sT0))
    E('v_lshlrev_b32 v17, 7, v16\ns_lshl_b32 s%d, s%d, 2\nv_add_u32 v%d, s%d, v17' % (sT0, sJ, vLSw, sT0))

    def reducer_addrs(vPush, vPull, vX, vXF, vQ, vS, t0):
        E('v_and_b32 v%d, 3, v1\nv_lshrrev_b32 v%d, 2, v1' % (t0, t0 + 1))
        E('s_lshl_b32 s%d, s%d, 6\nv_lshl_add_u32 v%d, v%d, 4, s%d' % (sT0, sW, t0 + 2, t0, sT0))
        E('s_mul_i32 s%d, s%d, %d\nv_lshl_add_u32 v%d, v%d, 8, v%d\nv_add_u32 v%d, s%d, v%d' % (sT1, sJ, RU, vPush, t0 + 1, t0 + 2, vPush, sT1, vPush))
        if vPull is not None:
            E('v_mul_u32_u24 v%d, %d, v%d\nv_add_u32 v%d, v%d, v%d\ns_lshl_b32 s%d, s%d, 8\nv_add_u32 v%d, s%d, v%d' % (vPull, RU, t0 + 1, vPull, vPull, t0 + 2, sT1, sJ, vPull, sT1, vPull))
        if vX is not None:
            E('v_lshrrev_b32 v%d, 4, v1\nv_lshl_add_u32 v%d, v%d, 2, v%d' % (t0 + 3, t0 + 3, t0 + 3, t0 + 2))
            E('s_lshl_b32 s%d, s%d, 14\ns_lshl_b32 s%d, s%d, 8\ns_add_u32 s%d, s%d, s%d\nv_add_u32 v%d, s%d, v%d' % (sT0, sJ, sT1, sX, sT0, sT0, sT1, t0 + 3, sT0, t0 + 3))
            E('v_and_b32 v%d, 3, v%d\nv_lshl_add_u32 v%d, v%d, 11, v%d' % (vX, t0 + 1, vX, vX, t0 + 3))
            E('s_and_b32 s%d, s%d, 7\ns_lshl_b32 s%d, s%d, 11\nv_add_u32 v%d, s%d, v%d' % (sT0, sJ, sT0, sT0, vXF, sT0, t0 + 3))
        E('v_lshrrev_b32 v%d, 5, v1\nv_lshlrev_b32 v%d, 2, v%d\nv_lshl_add_u32 v%d, v%d, 10, v%d' % (t0 + 3, t0 + 3, t0 + 3, t0 + 3, t0, t0 + 3))
        E('s_lshl_b32 s%d, s%d, 5\ns_lshl_b32 s%d, s%d, 3\ns_add_u32 s%d, s%d, s%d\nv_add_u32 v%d, s%d, v%d' % (sT0, sJ, sT1, sW, sT0, sT0, sT1, vQ, sT0, t0 + 3))
        if vS is not None:
            E('v_lshlrev_b32 v%d, 2, v%d\nv_lshl_add_u32 v%d, v%d, 5, v%d' % (vS, t0, vS, t0 + 1, vS))

    reducer_addrs(vRgPush, vRgPull, vXp, vXpF, vQSw, vSTr, 16)

    QF = 16; SA = 32; PA = 64; PB = 68; PP = 72; TM = 76; CF = 88; vLSE = 92; vM = 93; vLp = 94
    TORD = [0, 2, 4, 6, 1, 3, 5, 7]

    def vfrag_reads(dst, wp, t, e):
        a = vVT[e + 2 * (wp >> 1)]
        off = (wp & 1) * 32768 + t * 8192
        return ['ds_read_b64_tr_b16 %s, v%d offset:%d' % (vr(dst, 2), a, off),
                'ds_read_b64_tr_b16 %s, v%d offset:%d' % (vr(dst + 2, 2), a, off + 4096)]

    FR = [(wp, t, e) for wp in range(4) for t in range(4) for e in range(2)]
    fragreg = {f: KR + 16 * TORD[n // 4] + 4 * (n % 4) for n, f in enumerate(FR)}

    def scores_softmax(phase):
        pend = []
        for k, t in enumerate(TORD):
            for c in range(4):
                E('v_mfma_f32_16x16x32_bf16 %s, %s, %s, %s' % (vr(SA + 4 * t, 4), vr(KR + 16 * t + 4 * c, 4), vr(QF + 4 * c, 4), '0' if c == 0 else vr(SA + 4 * t, 4)))
                for _ in range(2):
                    if pend:
                        E(pend.pop(0))
            if phase == 2:
                for n in range(4 * k, 4 * k + 4):
                    pend += vfrag_reads(fragreg[FR[n]], *FR[n])
            if k == 4:
                pk = []
                for r in range(4):
                    pk.append('v_cndmask_b32 v%d, v%d, v%d, %s' % (PA + r, SA + r, SA + 8 + r, sr(sM1, 2)))
                for r in range(4):
                    pk.append('v_cndmask_b32 v%d, v%d, v%d, %s' % (PA + r, PA + r, SA + 16 + r, sr(sM2, 2)))
                for r in range(4):
                    pk.append('v_cndmask_b32 v%d, v%d, v%d, %s' % (PA + r, PA + r, SA + 24 + r, sr(sM3, 2)))
                pk.append('v_max3_f32 v%d, v%d, v%d, v%d' % (vM, PA, PA + 1, PA + 2))
                pk.append('v_max_f32 v%d, v%d, v%d' % (vM, vM, PA + 3))
                if phase == 2:
                    mix = []
                    while pk or pend:
                        if pend: mix.append(pend.pop(0))
                        if pk: mix.append(pk.pop(0))
                    pend = mix
                else:
                    pend = pk
        for r in range(4):
            E('v_cndmask_b32 v%d, v%d, v%d, %s' % (PB + r, SA + 4 + r, SA + 12 + r, sr(sM1, 2)))
        while pend:
            E(pend.pop(0))
        for r in range(4):
            E('v_cndmask_b32 v%d, v%d, v%d, %s' % (PB + r, PB + r, SA + 20 + r, sr(sM2, 2)))
        for r in range(4):
            E('v_cndmask_b32 v%d, v%d, v%d, %s' % (PB + r, PB + r, SA + 28 + r, sr(sM3, 2)))
        E('v_max3_f32 v%d, v%d, v%d, v%d\nv_max3_f32 v%d, v%d, v%d, v%d' % (vM, vM, PB, PB + 1, vM, vM, PB + 2, PB + 3))
        allred_dpp('v_max_f32', vM)
        allred_rows('v_max_f32', vM, TM)
        E('v_mul_f32_e64 v%d, s%d, -v%d' % (TM, sSig, vM))
        for r in range(8):
            E('v_fma_f32 v%d, v%d, s%d, v%d' % (PA + r, PA + r, sSig, TM))
        for r in range(8):
            E('v_exp_f32 v%d, v%d' % (PA + r, PA + r))
        for r in range(4):
            E('v_cvt_pk_bf16_f32 v%d, v%d, v%d' % (PP + r, PA + 2 * r, PA + 2 * r + 1))
        E('ds_write_b128 v%d, %s' % (vPXw, vr(PP, 4)))
        E('v_add_f32 v%d, v%d, v%d\nv_add_f32 v%d, v%d, v%d' % (TM, PA, PA + 1, TM + 1, PA + 2, PA + 3))
        E('v_add_f32 v%d, v%d, v%d\nv_add_f32 v%d, v%d, v%d' % (TM + 2, PA + 4, PA + 5, TM + 3, PA + 6, PA + 7))
        E('v_add_f32 v%d, v%d, v%d\nv_add_f32 v%d, v%d, v%d\nv_add_f32 v%d, v%d, v%d' % (TM, TM, TM + 1, TM + 2, TM + 2, TM + 3, TM + 5, TM, TM + 2))
        E('v_mov_b32 v%d, v%d' % (TM + 4, vM))
        E('s_lshl_b32 s%d, s%d, 9\nv_add_u32 v%d, s%d, v%d' % (sT0, sW, TM + 6, sT0, vMLa))
        E('ds_write_b64 v%d, %s' % (TM + 6, vr(TM + 4, 2)))

    TC = 84
    MLR = 96

    def coef_reads():
        return ['ds_read_b64 %s, v%d offset:%d' % (vr(MLR + 2 * w, 2), vMLa, 512 * w) for w in range(4)]

    def coef_ops():
        o = []
        o.append('v_max3_f32 v%d, v%d, v%d, v%d' % (vM, MLR, MLR + 2, MLR + 4))
        o.append('v_max_f32 v%d, v%d, v%d' % (vM, vM, MLR + 6))
        for w in range(4):
            o.append('v_sub_f32 v%d, v%d, v%d' % (CF + w, MLR + 2 * w, vM))
        for w in range(4):
            o.append('v_mul_f32 v%d, s%d, v%d' % (CF + w, sSig, CF + w))
        for w in range(4):
            o.append('v_exp_f32 v%d, v%d' % (CF + w, CF + w))
        o.append('v_mul_f32 v%d, v%d, v%d' % (vLp, CF, MLR + 1))
        for w in range(1, 4):
            o.append('v_fmac_f32 v%d, v%d, v%d' % (vLp, CF + w, MLR + 2 * w + 1))
        o.append('v_add_f32_dpp v%d, v%d, v%d row_ror:4 %s' % (vLp, vLp, vLp, DPPM))
        o.append('v_add_f32_dpp v%d, v%d, v%d row_ror:8 %s' % (vLp, vLp, vLp, DPPM))
        for sw in ('16', '32'):
            o.append('v_mov_b32 v%d, v%d' % (TC, vLp))
            o.append('v_permlane%s_swap_b32 v%d, v%d' % (sw, vLp, TC))
            o.append('v_add_f32 v%d, v%d, v%d' % (vLp, vLp, TC))
        o.append('v_rcp_f32 v%d, v%d' % (TC + 1, vLp))
        o.append('v_log_f32 v%d, v%d' % (TC + 2, vLp))
        for w in range(4):
            o.append('v_mul_f32 v%d, v%d, v%d' % (CF + w, CF + w, TC + 1))
        o.append('v_fma_f32 v%d, v%d, s%d, v%d' % (vLSE, vM, sSig, TC + 2))
        return o

    OF = 104

    def publish_O():
        tag(range(OF, OF + 8), vTg)
        E('v_and_or_b32 v%d, v%d, s%d, v%d' % (vLSE, vLSE, sMsk, vTg))
        E('s_mov_b64 exec, %s' % sr(sMN4, 2))
        lstore(['buffer_store_dwordx4 %s, v%d, %s, s%d offen' % (vr(OF, 4), vOSw, sr(sWS, 4), sOSb),
                'buffer_store_dwordx4 %s, v%d, %s, s%d offen offset:2048' % (vr(OF + 4, 4), vOSw, sr(sWS, 4), sOSb)])
        skip = E.label('Lk')
        E('s_cmp_lg_u32 s%d, 0\ns_cbranch_scc1 %s\ns_mov_b64 exec, 15' % (sW, skip))
        lstore(['buffer_store_dword v%d, v%d, %s, s%d offen' % (vLSE, vLSw, sr(sWS, 4), sLSb)])
        E(skip + ':')
        E('s_mov_b64 exec, -1')

    def acc(wp, e):
        return SA + 8 * wp + 4 * e

    def fin_ops(wp):
        o = []
        for e in range(2):
            for r in range(4):
                if wp == 0:
                    o.append('v_mul_f32 v%d, v%d, v%d' % (OF + 4 * e + r, CF, acc(0, e) + r))
                else:
                    o.append('v_fmac_f32 v%d, v%d, v%d' % (OF + 4 * e + r, CF + wp, acc(wp, e) + r))
        return o

    E('s_waitcnt lgkmcnt(0)')
    settag(vTg, 0)
    E('s_barrier')
    stamp('A_b1')
    E('v_add_u32 v16, %d, v%d' % (LDS_Q, vQf))
    E('v_mov_b32 v17, %d\nds_read_b64 %s, v17' % (LDS_SIG, vr(TM, 2)))
    E('v_mov_b32 v%d, v16' % (TM + 8))
    for c in range(4):
        E('ds_read_b128 %s, v%d offset:%d' % (vr(QF + 4 * c, 4), TM + 8, 64 * c))
    E('s_waitcnt lgkmcnt(0)')
    E('v_readfirstlane_b32 s%d, v%d\nv_readfirstlane_b32 s%d, v%d' % (sSig, TM, sMode, TM + 1))
    scores_softmax(1)
    stamp('A_sm1')
    PF = 16
    for t in range(4):
        E('s_waitcnt vmcnt(%d) lgkmcnt(0)' % (24 - 8 * t))
        E('s_barrier')
        if t == 0:
            for s in coef_reads():
                E(s)
        for wp in range(4):
            E('ds_read_b128 %s, v%d offset:%d' % (vr(PF + 4 * wp, 4), vPXr, wp * 1024 + t * 64))
        if t == 0:
            E('s_waitcnt lgkmcnt(4)')
            for s in coef_ops():
                E(s)
        for half in range(2):
            fr = [(wp, e) for wp in (2 * half, 2 * half + 1) for e in range(2)]
            base = 64 if half == 0 else 104
            for n, (wp, e) in enumerate(fr):
                for s in vfrag_reads(base + 4 * n, wp, t, e):
                    E(s)
        for half in range(2):
            fr = [(wp, e) for wp in (2 * half, 2 * half + 1) for e in range(2)]
            base = 64 if half == 0 else 104
            E('s_waitcnt lgkmcnt(%d)' % (8 if half == 0 else 0))
            for n, (wp, e) in enumerate(fr):
                E('v_mfma_f32_16x16x32_bf16 %s, %s, %s, %s' % (vr(acc(wp, e), 4), vr(base + 4 * n, 4), vr(PF + 4 * wp, 4), '0' if t == 0 else vr(acc(wp, e), 4)))
    for wp in range(4):
        for s in fin_ops(wp):
            E(s)
    stamp('A_pv1')
    publish_O()
    E('s_barrier')
    if maybe_stop('OS0'):
        pass
    else:
        RA, RBb = 16, 20

        def red_gather(vaddr, s0, s16, partial=False):
            def loads():
                E('buffer_load_dwordx4 %s, v%d, %s, s%d offen sc1' % (vr(RA, 4), vaddr, sr(sWS, 4), s0))
                if partial:
                    E('s_mov_b64 exec, %s' % sr(sMb, 2))
                E('buffer_load_dwordx4 %s, v%d, %s, s%d offen sc1' % (vr(RBb, 4), vaddr, sr(sWS, 4), s16))
                if partial:
                    E('s_mov_b64 exec, -1')
            poll(loads, lambda: check(list(range(RA, RA + 8)), vTg, vAcc))
            quad_reduce(RA, RBb)

        def xpush(sbase, sbase4, vT2):
            E('v_and_or_b32 v%d, v%d, s%d, v%d' % (RA, RA, sMsk, vT2))
            E('buffer_store_dword v%d, v%d, %s, s%d offen sc1' % (RA, vXp, sr(sWS, 4), sbase))
            E('buffer_store_dword v%d, v%d, %s, s%d offen sc1' % (RA, vXp, sr(sWS, 4), sbase4))

        vT2 = 119; vRs = 118

        def stats_gather(k):
            E('s_add_u32 s%d, s%d, %d' % (sT2, sSTb, 8192 * k))
            settag(28, 0)

            def loads():
                for n, off in enumerate((0, 512, 16, 528)):
                    E('buffer_load_dword v%d, v%d, %s, s%d offen offset:%d sc1' % (24 + n, vSTr, sr(sWS, 4), sT2, off))
            poll(loads, lambda: check([24, 25, 26, 27], 28, vAcc))
            E('v_add_f32 v24, v24, v25\nv_add_f32 v26, v26, v27')
            allred_dpp('v_add_f32', 24); allred_dpp('v_add_f32', 26)
            allred_rows('v_add_f32', 24, 25); allred_rows('v_add_f32', 26, 27)
            E('v_mul_f32 v24, 0x%x, v24' % f32(1 / 512.))
            E('v_mul_f32 v25, v24, v24\nv_mov_b32 v27, 0x%x\nv_fma_f32 v24, v26, v27, -v25' % f32(1 / 512.))
            E('v_max_f32 v24, 0, v24\nv_add_f32 v24, 0x%x, v24' % f32(1e-5))

        set_mask(sMb, 0x0000FFFFFFFFFFFF)

        def ffn_half(layer):
            settag(vTg, 1 + 4 * layer); settag(vT2, layer)
            E('s_barrier')
            stamp('A_a%d' % layer)
            red_gather(vRgPull, sR0, sR16pull)
            xpush(sXAo, sXA4, vT2)
            stamp('A_x%d' % (2 * layer + 1))
            E('s_barrier')
            if maybe_stop('XA%d' % layer):
                return True
            stats_gather(2 * layer)
            E('v_rcp_f32 v%d, v24' % vRs)
            settag(vTg, 3 + 4 * layer)
            for k in range(4):
                E('v_mov_b32 v%d, v%d' % (RBb + k, vTg))
            E('s_barrier')
            stamp('A_c%d' % layer)
            red_gather(vRgPull, sR0, sR16pull, partial=True)
            E('v_mul_f32 v%d, v%d, v%d' % (RA, RA, vRs))
            if layer == 0:
                xpush(sXBo, sXB4, vT2)
            else:
                E('v_and_or_b32 v%d, v%d, s%d, v%d' % (RA, RA, sMsk, vT2))
                E('s_mov_b64 exec, %s' % sr(sMN4, 2))
                E('buffer_store_dword v%d, v%d, %s, s%d offen sc1' % (RA, vXpF, sr(sWS, 4), sXBo))
                E('s_mov_b64 exec, -1')
            stamp('A_x%d' % (2 * layer + 2))
            E('s_barrier')
            return False

        if not ffn_half(0) and not maybe_stop('XB0'):
            settag(vTg, 4)
            E('s_barrier')
            stamp('A_e')
            red_gather(vRgPush, sR0, sR16push)
            E('v_mov_b32 v17, v16\nv_permlane16_swap_b32 v16, v17\nv_cvt_pk_bf16_f32 v16, v16, v17\nv_min_u32 v16, -2, v16')
            E('s_mov_b64 exec, %s' % sr(sMa, 2))
            lstore(['buffer_store_dword v16, v%d, %s, s%d offen' % (vQSw, sr(sWS, 4), sQ1)])
            E('s_mov_b64 exec, -1')
            stamp('A_q1')
            stats_gather(1)
            E('v_rsq_f32 v24, v24\nv_mul_f32 v24, 0x%x, v24\nv_readlane_b32 s%d, v24, s%d' % (f32(SCALE), sSig, sB))
            E('s_lshl_b32 s%d, s%d, 10\ns_add_u32 s%d, s%d, s%d' % (sT2, sB, sT2, sT2, sQ1))
            settag(vTg, 1)

            def qloads():
                for c in range(4):
                    E('buffer_load_dwordx4 %s, v%d, %s, s%d offen offset:%d sc1' % (vr(QF + 4 * c, 4), vQf, sr(sWS, 4), sT2, 64 * c))
            poll(qloads, lambda: check_sent(list(range(QF, QF + 16)), vAcc))
            stamp('A_qg')
            if not maybe_stop('QS1'):
                scores_softmax(2)
                E('s_waitcnt lgkmcnt(0)')
                E('s_barrier')
                stamp('A_b6')
                PFb = [16, 64]
                for t in range(4):
                    E('ds_read_b128 %s, v%d offset:%d' % (vr(PFb[0] + 4 * t, 4), vPXr, t * 64))
                for s in coef_reads():
                    E(s)
                co = coef_ops()
                fill = []
                for wp in range(4):
                    pf = PFb[wp & 1]
                    nxt = []
                    if wp < 3:
                        nxt = ['ds_read_b128 %s, v%d offset:%d' % (vr(PFb[(wp + 1) & 1] + 4 * t, 4), vPXr, (wp + 1) * 1024 + t * 64) for t in range(4)]
                    if wp == 0:
                        E('s_waitcnt lgkmcnt(4)')
                    else:
                        E('s_waitcnt lgkmcnt(0)')
                    k = 0
                    for t in range(4):
                        for e in range(2):
                            E('v_mfma_f32_16x16x32_bf16 %s, %s, %s, %s' % (vr(acc(wp, e), 4), vr(fragreg[(wp, t, e)], 4), vr(pf + 4 * t, 4), '0' if t == 0 else vr(acc(wp, e), 4)))
                            k += 1
                            if wp == 0 and k == 1:
                                E('s_waitcnt lgkmcnt(0)')
                                fill = list(co)
                            if k >= 2 and nxt:
                                E(nxt.pop(0))
                            for _ in range(2):
                                if fill:
                                    E(fill.pop(0))
                    if wp == 1:
                        while fill:
                            E(fill.pop(0))
                        fill = fin_ops(0)
                    elif wp == 2:
                        fill = fill + fin_ops(1) + fin_ops(2)
                while fill:
                    E(fill.pop(0))
                for s in fin_ops(3):
                    E(s)
                stamp('A_pv2')
                publish_O()
                E('s_barrier')
                if not maybe_stop('OS1'):
                    ffn_half(1)
        finish_wave()

    E('L_B:')
    E('s_setprio 3')
    WQ, WG, WO, WD = 128, 144, 160, 176
    XRES, ACT = 208, 212
    DA = 216
    vW4 = 2
    E('v_lshrrev_b32 v12, 4, v1\nv_and_b32 v13, 15, v1\nv_and_b32 v14, 3, v1')
    E('v_lshlrev_b32 v3, 4, v13\nv_lshl_add_u32 v2, v12, 13, v3')
    E('v_lshl_add_u32 v4, v12, 10, v3')
    E('v_lshrrev_b32 v5, 3, v1\nv_and_b32 v6, 7, v1\nv_mul_u32_u24 v5, 3584, v5\nv_lshl_add_u32 v5, v6, 4, v5')
    E('v_lshrrev_b32 v7, 2, v1\nv_lshlrev_b32 v7, 6, v7\nv_lshl_add_u32 v7, v14, 10, v7')
    E('v_lshlrev_b32 v8, 3, v12\nv_lshl_add_u32 v8, v14, 10, v8\ns_lshl_b32 s%d, s%d, 5\nv_add_u32 v8, s%d, v8' % (sT0, sJ, sT0))
    E('s_lshl_b32 s%d, s%d, 12' % (sT3, sW))
    E('v_lshrrev_b32 v9, 5, v1\nv_lshlrev_b32 v9, 15, v9\nv_bfe_u32 v10, v1, 3, 2\nv_lshl_add_u32 v9, v10, 10, v9\nv_lshl_add_u32 v9, v6, 2, v9')
    E('s_lshl_b32 s%d, s%d, 5\ns_lshl_b32 s%d, s%d, 12\ns_add_u32 s%d, s%d, s%d\ns_add_u32 s%d, s%d, %d\nv_mov_b32 v10, -1' % (sT0, sJ, sT1, sX, sT0, sT0, sT1, sT0, sT0, QS))
    E('s_waitcnt lgkmcnt(0)')
    E('s_load_dword s%d, s[26:27], 0' % sE)
    srd(sWS, 26, WS_USED)
    srd(sXs, 4, 4096); srd(sA, 10, 4194304); srd(sBv, 16, 1835008); srd(sC, 18, 1835008)
    skip = E.label('Lk')
    E('s_cmp_lg_u32 s%d, 0\ns_cbranch_scc1 %s' % (sW, skip))
    E('buffer_store_dword v10, v9, %s, s%d offen sc1' % (sr(sWS, 4), sT0))
    E(skip + ':')
    for k in range(4):
        E('buffer_load_dwordx4 %s, v7, %s, 0 offen offset:%d' % (vr(16 + 4 * k, 4), sr(sXs, 4), 16 * k))
    E('buffer_load_dwordx2 v[32:33], v8, %s, 0 offen' % sr(sXs, 4))
    E('s_lshl_b32 s%d, s%d, 17\ns_lshl_b32 s%d, s%d, 10\ns_add_u32 s%d, s%d, s%d\ns_lshl_b32 s%d, s%d, 8\ns_add_u32 s%d, s%d, s%d' % (sT0, sJ, sT1, sX, sT0, sT0, sT1, sT1, sW, sT0, sT0, sT1))
    for i in range(4):
        E('s_add_u32 m0, s%d, %d\ns_add_u32 s%d, s%d, %d' % (sT3, S0 + 1024 * i, sT1, sT0, i * 4 * 8192))
        E('buffer_load_dwordx4 v2, %s, s%d offen %s lds' % (sr(sA, 4), sT1, wpol))
    E('s_mul_i32 s%d, s%d, %d\ns_mul_i32 s%d, s%d, 448\ns_add_u32 s%d, s%d, s%d\ns_lshl_b32 s%d, s%d, 7\ns_add_u32 s%d, s%d, s%d' % (sT0, sJ, 16 * 3584, sT1, sX, sT0, sT0, sT1, sT1, sW, sT0, sT0, sT1))
    set_mask(sM1, 0x0F0F0F0F0F0F0F0F)
    E('s_cmp_eq_u32 s%d, 3\ns_cselect_b64 exec, %s, -1' % (sW, sr(sM1, 2)))
    for mtx in range(2):
        for i in range(2):
            E('s_add_u32 m0, s%d, %d\ns_add_u32 s%d, s%d, %d' % (sT3, S1 + 2048 * mtx + 1024 * i, sT1, sT0, i * 8 * 3584))
            E('buffer_load_dwordx4 v5, %s, s%d offen %s lds' % (sr(sBv if mtx == 0 else sC, 4), sT1, wpol))
    E('s_mov_b64 exec, -1')
    common_consts()
    srd(sOUT, 22, 4096); srd(sDBG, 24, 256); srd(sD, 20, 1835008)
    bPush, bQSw = 100, 101
    reducer_addrs(bPush, None, None, None, bQSw, None, 40)
    bTrW, bTrG, bTrD = 102, 103, 104
    bSPush, bSPull, bXr, bOSr, bLSr, bRG, bSTw, bCSw, bCSr, bCMw, bCMr, bOut, bRDs = range(105, 118)
    bTg, bAcc, bT2, bGW, bL16 = 118, 119, 120, 121, 122
    E('v_bfe_u32 v41, v1, 2, 2')
    E('v_lshlrev_b32 v42, 3, v14\nv_lshl_add_u32 v42, v12, 5, v42')
    E('v_lshl_add_u32 v%d, v41, 8, v42\nv_add_u32 v%d, s%d, v%d' % (bTrW, bTrW, sT3, bTrW))
    E('v_and_b32 v43, 1, v14\nv_lshlrev_b32 v43, 3, v43\nv_lshl_add_u32 v43, v12, 4, v43\nv_lshrrev_b32 v44, 1, v14\nv_lshl_add_u32 v43, v44, 11, v43')
    E('v_lshl_add_u32 v%d, v41, 7, v43\nv_add_u32 v%d, s%d, v%d\nv_add_u32 v%d, %d, v%d' % (bTrG, bTrG, sT3, bTrG, bTrG, S1, bTrG))
    E('v_and_b32 v43, 1, v41\nv_lshlrev_b32 v43, 1, v43\nv_lshrrev_b32 v44, 1, v41\nv_or_b32 v43, v43, v44')
    E('v_lshl_add_u32 v%d, v43, 10, v42\nv_add_u32 v%d, %d, v%d' % (bTrD, bTrD, LDS_WD, bTrD))
    E('v_add_u32 v%d, %d, v%d' % (bTrW, S0, bTrW))
    E('s_lshl_b32 s%d, s%d, 3\nv_add_u32 v43, s%d, v12' % (sT0, sW, sT0))
    E('v_mul_u32_u24 v%d, %d, v43\nv_add_u32 v%d, v%d, v3\ns_lshl_b32 s%d, s%d, 8\nv_add_u32 v%d, s%d, v%d' % (bSPush, RU, bSPush, bSPush, sT1, sJ, bSPush, sT1, bSPush))
    E('s_mul_i32 s%d, s%d, %d\nv_lshl_add_u32 v%d, v43, 8, v3\nv_add_u32 v%d, s%d, v%d' % (sT1, sJ, RU, bSPull, bSPull, sT1, bSPull))
    E('v_lshlrev_b32 v%d, 4, v1\nv_add_u32 v%d, s%d, v%d' % (bRDs, bRDs, sT1, bRDs))
    E('v_lshlrev_b32 v44, 4, v14\nv_lshl_add_u32 v44, v41, 5, v44\nv_lshl_add_u32 v44, v43, 12, v44\ns_lshl_b32 s%d, s%d, 7\nv_add_u32 v%d, s%d, v44' % (sT0, sJ, bCSw, sT0))
    E('v_lshrrev_b32 v44, 2, v1\nv_lshlrev_b32 v44, 7, v44\nv_and_b32 v45, 1, v14\nv_lshl_add_u32 v44, v45, 4, v44\ns_lshl_b32 s%d, s%d, 12\ns_lshl_b32 s%d, s%d, 5\ns_add_u32 s%d, s%d, s%d\nv_add_u32 v%d, s%d, v44' % (sT0, sJ, sT1, sW, sT0, sT0, sT1, bCSr, sT0))
    E('v_lshlrev_b32 v44, 2, v12\nv_lshl_add_u32 v44, v14, 11, v44\ns_lshl_b32 s%d, s%d, 6\ns_lshl_b32 s%d, s%d, 4\ns_add_u32 s%d, s%d, s%d\nv_add_u32 v%d, s%d, v44' % (sT0, sJ, sT1, sW, sT0, sT0, sT1, bCMw, sT0))
    E('s_lshl_b32 s%d, s%d, 9\nv_lshl_add_u32 v%d, v1, 2, s%d' % (sT0, sW, bCMr, sT0))
    E('v_lshlrev_b32 v44, 4, v14\nv_lshl_add_u32 v44, v12, 6, v44\nv_lshl_add_u32 v45, v41, 8, v44')
    E('s_lshl_b32 s%d, s%d, 3\ns_add_u32 s%d, s%d, s%d\ns_lshl_b32 s%d, s%d, 11\nv_add_u32 v%d, s%d, v45' % (sT0, sJ, sT0, sT0, sX, sT0, sT0, bXr, sT0))
    E('s_mul_i32 s%d, s%d, %d\nv_add_u32 v%d, s%d, v45' % (sT1, sJ, RU, bRG, sT1))
    E('v_lshl_add_u32 v44, v14, 3, v41\nv_lshlrev_b32 v45, 4, v12\nv_lshl_add_u32 v45, v44, 6, v45\ns_lshl_b32 s%d, s%d, 11\nv_add_u32 v%d, s%d, v45' % (sT0, sJ, bOSr, sT0))
    E('s_lshl_b32 s%d, s%d, 7\nv_lshl_add_u32 v%d, v44, 2, s%d' % (sT0, sB, bLSr, sT0))
    E('v_lshrrev_b32 v44, 5, v1\nv_lshlrev_b32 v44, 4, v44\nv_lshl_add_u32 v44, v14, 2, v44\ns_lshl_b32 s%d, s%d, 5\nv_add_u32 v%d, s%d, v44' % (sT0, sJ, bSTw, sT0))
    E('v_mov_b32 v%d, v8' % bOut)
    E('s_lshl_b32 s%d, s%d, 5\nv_mov_b32 v%d, s%d\nv_lshlrev_b32 v%d, 4, v1' % (sT0, sX, bGW, sT0, bL16))
    sCSb, sCMb, sR4push = sM2, sM2 + 1, sM3
    E('s_lshl_b32 s%d, s%d, 17\ns_add_u32 s%d, s%d, %d' % (sCSb, sX, sCSb, sCSb, CSA))
    E('s_lshl_b32 s%d, s%d, 12\ns_add_u32 s%d, s%d, %d' % (sCMb, sX, sCMb, sCMb, CM))
    E('s_add_u32 s%d, s%d, %d' % (sR4push, sR0, 4 * RU))

    E('s_waitcnt vmcnt(8) lgkmcnt(0)')
    skip = E.label('Lk')
    E('s_cmp_lg_u32 s%d, 0\ns_cbranch_scc1 %s' % (sW, skip))
    E('v_lshlrev_b32 v44, 7, v1\ns_lshl_b32 s%d, s%d, 2\nv_add_u32 v44, s%d, v44\nv_mov_b32 v45, s%d\ns_mov_b64 exec, 15' % (sT0, sJ, sT0, sE))
    E('buffer_store_dword v45, v44, %s, s%d offen sc1\ns_mov_b64 exec, -1' % (sr(sWS, 4), sLSb))
    E(skip + ':')
    E('v_mov_b32 v34, 0x3f803f80\nv_mov_b32 v35, 0\nv_mov_b32 v36, 0')
    for k in range(16):
        E('v_dot2_f32_bf16 v35, v%d, v34, v35' % (16 + k))
    for k in range(16):
        E('v_dot2_f32_bf16 v36, v%d, v%d, v36' % (16 + k, 16 + k))
    allred_dpp('v_add_f32', 35); allred_rows('v_add_f32', 35, 37)
    allred_dpp('v_add_f32', 36); allred_rows('v_add_f32', 36, 37)
    E('v_mul_f32 v35, 0x%x, v35' % f32(1 / 512.))
    E('v_mul_f32 v37, v35, v35\nv_mov_b32 v38, 0x%x\nv_fma_f32 v36, v36, v38, -v37' % f32(1 / 512.))
    E('v_max_f32 v36, 0, v36\nv_add_f32 v36, 0x%x, v36\nv_rsq_f32 v36, v36\nv_mul_f32 v36, 0x%x, v36' % (f32(1e-5), f32(SCALE)))
    E('v_readlane_b32 s%d, v36, s%d' % (sSig, sB))

    def unpack_x(src):
        E('v_lshlrev_b32 v%d, 16, v%d\nv_and_b32 v%d, 0xffff0000, v%d' % (XRES, src, XRES + 1, src))
        E('v_lshlrev_b32 v%d, 16, v%d\nv_and_b32 v%d, 0xffff0000, v%d' % (XRES + 2, src + 1, XRES + 3, src + 1))
    unpack_x(32)
    for k in range(4):
        E('v_sub_f32 v%d, v%d, v35' % (16 + k, XRES + k))
    E('v_cvt_pk_bf16_f32 v%d, v16, v17\nv_cvt_pk_bf16_f32 v%d, v18, v19' % (ACT, ACT + 1))

    def wreg(W, t, k):
        return W + 8 * t + 2 * k

    def tr_std(W, base_off):
        for t in range(2):
            for k in range(4):
                E('ds_read_b64_tr_b16 %s, v%d offset:%d' % (vr(wreg(W, t, k), 2), bTrW, base_off + 1024 * k + 128 * t))

    def gemv16(W, act, d0):
        for k in range(4):
            for t in range(2):
                E('v_mfma_f32_4x4x4_16b_bf16 %s, %s, %s, %s blgp:%d' % (vr(d0 + 4 * t, 4), vr(wreg(W, t, k), 2), vr(act, 2), '0' if k == 0 else vr(d0 + 4 * t, 4), 4 + k))

    def push_stores(d0, second=True):
        o = ['buffer_store_dwordx4 %s, v%d, %s, s%d offen' % (vr(d0, 4), bSPush, sr(sWS, 4), sR0)]
        if second:
            o.append('buffer_store_dwordx4 %s, v%d, %s, s%d offen' % (vr(d0 + 4, 4), bSPush, sr(sWS, 4), sR4push))
        return o

    E('s_waitcnt vmcnt(4) lgkmcnt(0)')
    stamp('B_wq')
    tr_std(WQ, 0)
    settag(bTg, 0)
    E('s_waitcnt lgkmcnt(0)')
    gemv16(WQ, ACT, DA)
    tag(range(DA, DA + 8), bTg)
    lstore(push_stores(DA), always_sc1=True)
    E('s_waitcnt vmcnt(2)')
    for t in range(2):
        for k in range(4):
            E('ds_read_b64_tr_b16 %s, v%d offset:%d' % (vr(wreg(WG, t, k), 2), bTrG, 512 * k + 64 * t))
    E('v_mov_b32 v20, 0x3f803f80\nv_mov_b32 v21, 0x3f803f80')
    gemv16(WQ, 20, DA + 8)
    E('s_waitcnt lgkmcnt(0)')
    gemv16(WG, 20, DA + 16)
    set_mask(sM1, 0x2222222222222222)
    for k in range(8):
        E('v_cndmask_b32 v%d, v%d, v%d, %s' % (DA + 8 + k, DA + 8 + k, DA + 16 + k, sr(sM1, 2)))
    tag(range(DA + 8, DA + 16), bTg)
    set_mask(sM1, 0x3333333333333333)
    E('s_add_u32 s%d, s%d, 16384' % (sT2, sCSb))
    E('s_mov_b64 exec, %s' % sr(sM1, 2))
    E('buffer_store_dwordx4 %s, v%d, %s, s%d offen sc1' % (vr(DA + 8, 4), bCSw, sr(sWS, 4), sCSb))
    E('buffer_store_dwordx4 %s, v%d, %s, s%d offen sc1' % (vr(DA + 12, 4), bCSw, sr(sWS, 4), sT2))
    E('s_mov_b64 exec, -1')
    E('s_getreg_b32 s%d, hwreg(HW_REG_XCC_ID, 0, 4)\ns_and_b32 s%d, s%d, 7\ns_lshl_b32 s%d, s%d, 3' % (sT0, sT0, sT0, sT0, sT0))
    E('s_mov_b64 s[100:101], 1\ns_lshl_b64 s[100:101], s[100:101], s%d' % sT0)
    skip = E.label('Lk')
    E('s_cmp_lg_u32 s%d, 0\ns_cbranch_scc1 %s' % (sW, skip))
    E('v_mov_b32 v22, s100\nv_mov_b32 v23, s101')
    E('s_mov_b64 exec, 1\nbuffer_atomic_add_x2 v[22:23], v%d, %s, 0 offen\ns_mov_b64 exec, -1' % (bGW, sr(sDBG, 4)))
    E(skip + ':')
    stamp('B_rq0')

    RES = DA + 16

    def alpha(gw):
        def l_a(b):
            if gw:
                E('s_mov_b64 exec, 1\nbuffer_load_dwordx2 %s, v%d, %s, 0 offen sc1\ns_mov_b64 exec, -1' % (vr(b + 8, 2), bGW, sr(sDBG, 4)))
            E('buffer_load_dwordx4 %s, v%d, %s, s%d offen sc1' % (vr(b, 4), bPush, sr(sWS, 4), sR0))
            E('buffer_load_dwordx4 %s, v%d, %s, s%d offen sc1' % (vr(b + 4, 4), bPush, sr(sWS, 4), sR16push))

        def c_a(b):
            check(list(range(b, b + 8)), bTg, bAcc)
            if gw:
                E('s_mov_b64 %s, vcc\ns_mov_b64 exec, 1' % sr(sM1, 2))
                E('v_sad_u8 v%d, v%d, 0, 0\nv_sad_u8 v%d, v%d, 0, v%d\nv_cmp_ne_u32 vcc, 32, v%d' % (bAcc, b + 8, bAcc, b + 9, bAcc, bAcc))
                E('s_mov_b64 exec, -1\ns_or_b64 vcc, vcc, %s' % sr(sM1, 2))
        poll_pipe(3 if gw else 2, 10 if gw else 8, 16, l_a, c_a, RES, 12, 2, afirst, agap)
    w0 = E.label('Lw'); join = E.label('Lj')
    E('s_cmp_eq_u32 s%d, 0\ns_cbranch_scc1 %s' % (sW, w0))
    alpha(False)
    E('s_branch %s' % join)
    E(w0 + ':')
    alpha(True)
    E('v_readfirstlane_b32 s%d, v%d\nv_readfirstlane_b32 s%d, v%d' % (sT0, RES + 8, sT1, RES + 9))
    E('s_lshl_b64 s[100:101], s[100:101], 5')
    E('s_xor_b32 s%d, s%d, s100\ns_xor_b32 s%d, s%d, s101\ns_or_b32 s%d, s%d, s%d\ns_cmp_eq_u32 s%d, 0\ns_cselect_b32 s%d, 1, 0' % (sT0, sT0, sT1, sT1, sT0, sT0, sT1, sT0, sMode))
    if force_slow:
        E('s_mov_b32 s%d, 0' % sMode)
    E(join + ':')
    quad_reduce(RES, RES + 4)
    E('v_mov_b32 v%d, v%d\nv_permlane16_swap_b32 v%d, v%d\nv_cvt_pk_bf16_f32 v%d, v%d, v%d\nv_min_u32 v%d, -2, v%d' % (RES + 1, RES, RES, RES + 1, RES, RES, RES + 1, RES, RES))
    E('s_mov_b64 exec, %s' % sr(sMa, 2))
    E('buffer_store_dword v%d, v%d, %s, s%d offen sc1' % (RES, bQSw, sr(sWS, 4), sQ0))
    E('s_mov_b64 exec, -1')
    stamp('B_q0')

    def wo_wd_loads():
        srd(sA, 12, 4194304)
        E('s_lshl_b32 s%d, s%d, 19\ns_lshl_b32 s%d, s%d, 14\ns_add_u32 s%d, s%d, s%d\ns_lshl_b32 s%d, s%d, 8\ns_add_u32 s%d, s%d, s%d' % (sT0, sX, sT1, sJ, sT0, sT0, sT1, sT1, sW, sT0, sT0, sT1))
        for i in range(4):
            E('s_add_u32 m0, s%d, %d\ns_add_u32 s%d, s%d, %d' % (sT3, S1 + 1024 * i, sT1, sT0, i * 4096))
            E('buffer_load_dwordx4 v4, %s, s%d offen %s lds' % (sr(sA, 4), sT1, wpol))
        skip = E.label('Lk')
        E('s_cmp_lg_u32 s%d, 3\ns_cbranch_scc1 %s\ns_cmp_ge_u32 s%d, 28\ns_cbranch_scc1 %s' % (sW, skip, sJ, skip))
        E('s_mul_i32 s%d, s%d, %d\ns_lshl_b32 s%d, s%d, 13\ns_add_u32 s%d, s%d, s%d' % (sT0, sX, 224 * 1024, sT1, sJ, sT0, sT0, sT1))
        for i in range(8):
            E('s_mov_b32 m0, %d\ns_add_u32 s%d, s%d, %d' % (LDS_WD + 1024 * i, sT1, sT0, i * 1024))
            E('buffer_load_dwordx4 v%d, %s, s%d offen %s lds' % (bL16, sr(sD, 4), sT1, wpol))
        E(skip + ':')

    if not late:
        wo_wd_loads()
    CSR = 64
    sCS2 = sM3 + 1
    E('s_add_u32 s%d, s%d, 2048' % (sCS2, sCSb))

    def l_cs():
        E('buffer_load_dwordx4 %s, v%d, %s, s%d offen sc1' % (vr(CSR, 4), bCSr, sr(sWS, 4), sCSb))
        E('buffer_load_dwordx4 %s, v%d, %s, s%d offen sc1' % (vr(CSR + 4, 4), bCSr, sr(sWS, 4), sCS2))
    l_cs()
    skip = E.label('Lk')
    E('s_cmp_lg_u32 s%d, 0\ns_cbranch_scc1 %s' % (sW, skip))
    E('s_lshl_b32 s%d, s%d, 10\ns_add_u32 s%d, s%d, s%d' % (sT2, sB, sT2, sT2, sQ0))
    poll_pipe(1, 4, 40, lambda b: E('buffer_load_dwordx4 %s, v%d, %s, s%d offen sc1' % (vr(b, 4), bL16, sr(sWS, 4), sT2)),
              lambda b: check_sent(list(range(b, b + 4)), bAcc), RES, 4, 5, bfirst, bgap)
    E('v_add_u32 v9, %d, v%d\nds_write_b128 v9, %s' % (LDS_Q, bL16, vr(RES, 4)))
    E('v_mov_b32 v9, %d\nv_mov_b32 v10, s%d\nv_mov_b32 v11, s%d\nds_write_b64 v9, v[10:11]' % (LDS_SIG, sSig, sMode))
    stamp('B_qg0')
    E(skip + ':')
    ok = E.label('Lo')
    E('s_cmp_lg_u32 s%d, 0\ns_cbranch_scc0 %s\ns_waitcnt vmcnt(0)\n%s:' % (sW, ok, ok))
    check(list(range(CSR, CSR + 8)), bTg, bAcc)
    ok = E.label('Lo')
    E('s_cbranch_vccz %s' % ok)
    poll(l_cs, lambda: check(list(range(CSR, CSR + 8)), bTg, bAcc))
    E(ok + ':')
    quad_reduce(CSR, CSR + 4)
    E('v_mul_f32 v%d, 0x%x, v%d' % (CSR, f32(1 / 512.), CSR))
    tag([CSR], bTg)
    set_mask(sM1, 0x0003000300030003)
    E('s_mov_b64 exec, %s' % sr(sM1, 2))
    E('buffer_store_dword v%d, v%d, %s, s%d offen sc1' % (CSR, bCMw, sr(sWS, 4), sCMb))
    E('s_mov_b64 exec, -1')

    def centre():
        settag(bTg, 0)

        def l_cm():
            for n, off in enumerate((0, 256, 2048, 2304)):
                E('buffer_load_dword v%d, v%d, %s, s%d offen offset:%d sc1' % (16 + n, bCMr, sr(sWS, 4), sCMb, off))
        poll(l_cm, lambda: check([16, 17, 18, 19], bTg, bAcc))
        for n, W in ((1, WG), (0, WQ)):
            for t in range(2):
                cmr = 16 + 2 * n + t
                for k in range(4):
                    for hh in range(2):
                        r = wreg(W, t, k) + hh
                        E('v_lshlrev_b32 v124, 16, v%d\nv_and_b32 v125, 0xffff0000, v%d' % (r, r))
                        E('v_sub_f32 v124, v124, v%d\nv_sub_f32 v125, v125, v%d\nv_cvt_pk_bf16_f32 v%d, v124, v125' % (cmr, cmr, r))
        stamp('B_ctr')
    E('s_waitcnt lgkmcnt(0)')
    stamp('B_init')
    E('s_barrier')
    E('v_mov_b32 v9, %d\nds_read_b32 v10, v9 offset:4\ns_waitcnt lgkmcnt(0)\nv_readfirstlane_b32 s%d, v10' % (LDS_SIG, sMode))
    if late:
        wo_wd_loads()
    for _ in range(4):
        E('s_barrier')
    E('s_waitcnt vmcnt(0)')
    tr_std(WO, S1 - S0)
    skip = E.label('Lk')
    E('s_cmp_lg_u32 s%d, 3\ns_cbranch_scc1 %s' % (sW, skip))
    for t in range(8):
        for q in range(2):
            E('ds_read_b64_tr_b16 %s, v%d offset:%d' % (vr(WD + 4 * t + 2 * q, 2), bTrD, 4096 * q + 128 * t))
    E(skip + ':')
    E('s_waitcnt lgkmcnt(0)')
    stamp('B_w')

    def oproj(layer):
        settag(bTg, layer); settag(bT2, 1 + 4 * layer)
        E('s_barrier')
        stamp('B_f%d' % layer)
        if stop == 'OS%d' % layer:
            return True

        def loads():
            E('buffer_load_dword v24, v%d, %s, s%d offen sc1\nbuffer_load_dword v25, v%d, %s, s%d offen offset:16 sc1' % (bLSr, sr(sWS, 4), sLSb, bLSr, sr(sWS, 4), sLSb))
            E('buffer_load_dwordx4 v[16:19], v%d, %s, s%d offen sc1\nbuffer_load_dwordx4 v[20:23], v%d, %s, s%d offen offset:256 sc1' % (bOSr, sr(sWS, 4), sOSb, bOSr, sr(sWS, 4), sOSb))
        poll(loads, lambda: check(list(range(16, 26)), bTg, bAcc))
        stamp('B_og%d' % layer)
        E('v_max_f32 v26, v24, v25')
        allred_dpp('v_max_f32', 26)
        E('v_sub_f32 v24, v24, v26\nv_sub_f32 v25, v25, v26\nv_exp_f32 v24, v24\nv_exp_f32 v25, v25')
        for k in range(4):
            E('v_mul_f32 v%d, v24, v%d' % (16 + k, 16 + k))
        E('v_add_f32 v26, v24, v25')
        for k in range(4):
            E('v_fmac_f32 v%d, v25, v%d' % (16 + k, 20 + k))
        for ro in (4, 8):
            E('v_add_f32_dpp v26, v26, v26 row_ror:%d %s' % (ro, DPPM))
            for k in range(4):
                E('v_add_f32_dpp v%d, v%d, v%d row_ror:%d %s' % (16 + k, 16 + k, 16 + k, ro, DPPM))
        E('v_rcp_f32 v26, v26')
        for k in range(4):
            E('v_mul_f32 v%d, v%d, v26' % (16 + k, 16 + k))
        E('v_cvt_pk_bf16_f32 v%d, v16, v17\nv_cvt_pk_bf16_f32 v%d, v18, v19' % (ACT, ACT + 1))
        gemv16(WO, ACT, DA)
        tag(range(DA, DA + 8), bT2)
        lstore(['buffer_store_dwordx4 %s, v%d, %s, s%d offen' % (vr(DA, 4), bSPull, sr(sWS, 4), sR0),
                'buffer_store_dwordx4 %s, v%d, %s, s%d offen offset:1024' % (vr(DA + 4, 4), bSPull, sr(sWS, 4), sR0)])
        stamp('B_ro%d' % layer)
        E('s_barrier')
        if layer == 0:
            centre()
        return False

    def xr(sbase):
        if xdelay:
            E('s_sleep %d' % xdelay)

        def loads():
            E('buffer_load_dwordx4 v[16:19], v%d, %s, s%d offen sc1\nbuffer_load_dwordx4 v[20:23], v%d, %s, s%d offen offset:1024 sc1' % (bXr, sr(sWS, 4), sbase, bXr, sr(sWS, 4), sbase))
        poll(loads, lambda: check(list(range(16, 24)), bTg, bAcc))
        for k in range(4):
            E('v_add_f32 v%d, v%d, v%d' % (16 + k, 16 + k, 20 + k))
        for ro in (4, 8):
            for k in range(4):
                E('v_add_f32_dpp v%d, v%d, v%d row_ror:%d %s' % (16 + k, 16 + k, 16 + k, ro, DPPM))
        for k in range(4):
            E('v_add_f32 v%d, v%d, v%d' % (16 + k, 16 + k, XRES + k))
        E('v_cvt_pk_bf16_f32 v%d, v16, v17\nv_cvt_pk_bf16_f32 v%d, v18, v19' % (ACT, ACT + 1))

    def publish_stats(k):
        unpack_x(ACT)
        skip = E.label('Lk')
        E('s_cmp_lg_u32 s%d, 2\ns_cbranch_scc1 %s' % (sW, skip))
        E('v_add_f32 v30, v%d, v%d\nv_add_f32 v31, v%d, v%d\nv_add_f32 v30, v30, v31' % (XRES, XRES + 1, XRES + 2, XRES + 3))
        E('v_mul_f32 v31, v%d, v%d' % (XRES, XRES))
        for q in range(1, 4):
            E('v_fmac_f32 v31, v%d, v%d' % (XRES + q, XRES + q))
        E('v_permlane32_swap_b32 v30, v31\nv_add_f32 v30, v30, v31\nv_mov_b32 v31, v30\nv_permlane16_swap_b32 v30, v31\nv_add_f32 v30, v30, v31')
        settag(31, 0)
        tag([30], 31)
        E('s_add_u32 s%d, s%d, %d' % (sT2, sSTb, 8192 * k))
        E('s_mov_b64 exec, %s' % sr(sMa, 2))
        lstore(['buffer_store_dword v30, v%d, %s, s%d offen' % (bSTw, sr(sWS, 4), sT2)])
        E('s_mov_b64 exec, -1')
        E(skip + ':')

    def ffn(layer):
        settag(bTg, layer); settag(bT2, 2 + 4 * layer)
        E('s_barrier')
        if stop == 'XA%d' % layer:
            return True
        xr(sXAo)
        stamp('B_xr%d' % (2 * layer + 1))
        gemv16(WG, ACT, DA)
        tag(range(DA, DA + 8), bT2)
        w3 = E.label('Lw'); join = E.label('Lj')
        E('s_cmp_eq_u32 s%d, 3\ns_cbranch_scc1 %s' % (sW, w3))
        lstore(push_stores(DA))
        publish_stats(2 * layer)
        E('s_branch %s' % join)
        E(w3 + ':')
        lstore(push_stores(DA, second=False))
        stamp('B_rg%d' % layer)
        unpack_x(ACT)
        E('s_cmp_ge_u32 s%d, 28\ns_cbranch_scc1 %s' % (sJ, join))
        settag(bTg, 3 + 4 * layer)

        def loads():
            for i in range(8):
                E('buffer_load_dwordx4 %s, v%d, %s, s%d offen offset:%d sc1' % (vr(16 + 4 * i, 4), bRG, sr(sWS, 4), sR0 if i < 4 else sR16push, 1024 * (i & 3)))
        poll(loads, lambda: check([16 + 4 * i for i in range(8)], bT2, bAcc))
        stamp('B_gg%d' % layer)
        for st in (16, 8, 4):
            for i in range(st):
                E('v_add_f32 v%d, v%d, v%d' % (16 + i, 16 + i, 16 + st + i))
        for ro in (4, 8):
            for k in range(4):
                E('v_add_f32_dpp v%d, v%d, v%d row_ror:%d %s' % (16 + k, 16 + k, 16 + k, ro, DPPM))
        E('v_permlane32_swap_b32 v16, v17\nv_permlane32_swap_b32 v18, v19')
        E('v_max_f32 v16, 0, v16\nv_max_f32 v18, 0, v18\nv_mul_f32 v16, v16, v17\nv_mul_f32 v18, v18, v19')
        E('v_cvt_pk_bf16_f32 v20, v16, v18\nv_mov_b32 v21, v20\nv_permlane32_swap_b32 v20, v21')
        for q in range(2):
            for t in range(8):
                E('v_mfma_f32_4x4x4_16b_bf16 %s, %s, v[20:21], %s blgp:%d' % (vr(DA + 4 * t, 4), vr(WD + 4 * t + 2 * q, 2), '0' if q == 0 else vr(DA + 4 * t, 4), 4 + q))
        tag(range(DA, DA + 32), bTg)
        lstore(['buffer_store_dwordx4 %s, v%d, %s, s%d offen offset:%d' % (vr(DA + 4 * t, 4), bRDs, sr(sWS, 4), sR0 if t < 4 else sR16push, 1024 * (t & 3)) for t in range(8)])
        stamp('B_rd%d' % layer)
        E(join + ':')
        E('s_barrier')
        return False

    done = oproj(0) or ffn(0)
    if not done:
        settag(bTg, 0); settag(bT2, 4)
        E('s_barrier')
        if stop != 'XB0':
            xr(sXBo)
            stamp('B_xr2')
            gemv16(WQ, ACT, DA)
            tag(range(DA, DA + 8), bT2)
            lstore(push_stores(DA))
            publish_stats(1)
            E('s_barrier')
            if stop != 'QS1':
                E('s_barrier')
                if not (oproj(1) or ffn(1)):
                    settag(bTg, 1)
                    E('s_barrier')
                    E('s_and_b32 s%d, s%d, 7\ns_cmp_lg_u32 s%d, s%d\ns_cbranch_scc1 L_exit' % (sT0, sJ, sT0, sX))
                    E('s_cmp_lg_u32 s%d, 0\ns_cbranch_scc1 L_exit' % sW)
                    xr(sXBo)
                    E('s_mov_b64 exec, %s' % sr(sMN4, 2))
                    E('buffer_store_dwordx2 %s, v%d, %s, 0 offen' % (vr(ACT, 2), bOut, sr(sOUT, 4)))
                    E('s_mov_b64 exec, -1')
                    stamp('B_out')
                    E('s_cmp_lg_u32 s2, 0\ns_cbranch_scc1 L_exit')
                    E('s_add_u32 s%d, s%d, 16\nv_mov_b32 v16, s%d\nv_mov_b32 v17, 0\ns_mov_b64 exec, 1' % (sT0, sE, sT0))
                    E('buffer_store_dword v16, v17, %s, 0 offen\ns_mov_b64 exec, -1' % sr(sWS, 4))
    E('s_branch L_exit')

    for s in stubs:
        E(s)
    E('L_fail:')
    if stamps:
        E('s_mov_b64 exec, -1\nv_writelane_b32 v%d, -1, 63' % vStamp)
    E('L_exit:')
    if stamps:
        E('s_mov_b64 exec, -1')
        E('s_lshl_b32 s%d, s2, 3\ns_add_u32 s%d, s%d, s%d\ns_lshl_b32 s%d, s%d, 8' % (sT0, sT0, sT0, sWave, sT0, sT0))
        E('s_add_u32 s4, s26, s%d\ns_addc_u32 s5, s27, 0\ns_add_u32 s4, s4, 0x%x\ns_addc_u32 s5, s5, 0' % (sT0, STAMP))
        E('v_lshlrev_b32 v16, 2, v1\nglobal_store_dword v16, v%d, s[4:5]' % vStamp)
        if dbgst:
            E('v_readlane_b32 s4, v%d, 0\nv_cmp_ne_u32 vcc, 0, v%d\nv_subrev_u32 v17, s4, v%d\nv_cndmask_b32 v17, 0, v17, vcc' % (vStamp, vStamp, vStamp))
            E('s_mov_b32 s8, s24\ns_mov_b32 s9, s25\ns_mov_b32 s10, 256\ns_mov_b32 s11, 0x20000\ns_mov_b64 exec, 0xfcfc')
            E('buffer_atomic_umax v17, v16, s[8:11], 0 offen')
    E('L_end:')
    E('s_endpgm')

    body = E.finish()
    ref = open('cdna_kernels/%s.s.ref' % KNAME).read().split('\n')
    hdr = [l for l in ref if l.startswith(';') and '@launch' not in l][:16]
    txt = '\n'.join(hdr) + '\n; @launch grid=(256,1,1) block=(512,1,1) lds=%d\n' % LDS_TOTAL
    txt += '.amdgcn_target "amdgcn-amd-amdhsa--gfx950"\n.text\n.globl %s_kernel\n.p2align 8\n.type %s_kernel,@function\n%s_kernel:\n' % (KNAME, KNAME, KNAME)
    txt += body
    txt += '''.section .rodata,"a"
.p2align 6
.amdhsa_kernel %s_kernel
  .amdhsa_next_free_vgpr 256
  .amdhsa_next_free_sgpr 102
  .amdhsa_accum_offset 256
  .amdhsa_group_segment_fixed_size 0
  .amdhsa_kernarg_size 96
  .amdhsa_user_sgpr_count 2
  .amdhsa_user_sgpr_kernarg_segment_ptr 1
  .amdhsa_system_sgpr_workgroup_id_x 1
.end_amdhsa_kernel
''' % KNAME
    return txt, stamp_names


if __name__ == '__main__':
    import argparse, json
    ap = argparse.ArgumentParser()
    ap.add_argument('-o', default='cdna_kernels/%s.s' % KNAME)
    ap.add_argument('--stop', default=None)
    ap.add_argument('--stamps', action='store_true')
    ap.add_argument('--opt', action='append', default=[])
    a = ap.parse_args()
    kw = {}
    for o in a.opt:
        k, v = o.split('=')
        try:
            v = int(v)
        except ValueError:
            pass
        kw[k] = v
    if 'dbgst' in kw:
        kw['dbgst'] = kw['dbgst'].split(',')
    txt, names = build(stop=a.stop, stamps=a.stamps, **kw)
    open(a.o, 'w').write(txt)
    if a.stamps:
        json.dump(names, open(a.o + '.json', 'w'))
    print('wrote', a.o, len(txt), 'bytes', txt.count('\n'), 'lines')
```

```python
import sys, struct, os
sys.path.insert(0, os.path.dirname(os.path.abspath(__file__)))
from emit import Emitter

KNAME = 'interleave_layers__sliding_block_cached__glu_gated_reglu__decode'

QS = 0x10000
ST = 0x20000
CM = 0x28000
LS = 0x30000
OS = 0x80000
CSA = 0x100000
RB = 0x200000
RU = 8448
RX = 32 * RU
XA = 0x480000
XB = 0x500000
WS_USED = 0x580000
STAMP = 0x10000000

S0 = 131072
S1 = S0 + 16384
LDS_WD = S0
LDS_Q = S0 + 8192
LDS_SIG = S0 + 9216
LDS_PX = S0 + 10240
LDS_ML = S0 + 14336
LDS_TOTAL = 163840


def f32(x):
    return struct.unpack('<I', struct.pack('<f', x))[0]


LOG2E = 1.4426950408889634
SCALE = (128 ** -0.5) * LOG2E


def vr(a, n=1):
    return 'v%d' % a if n == 1 else 'v[%d:%d]' % (a, a + n - 1)


def sr(a, n=1):
    return 's%d' % a if n == 1 else 's[%d:%d]' % (a, a + n - 1)


DPPM = 'row_mask:0xf bank_mask:0xf'


def build(stop=None, stamps=False, dbgst=None, calib=None, late=True, rot=37, xdelay=0, force_slow=False, kvpol='nt', wpol='nt', afirst=30, agap=30, bfirst=12, bgap=14):
    E = Emitter()
    stubs = []

    sWS = 28; sA = 32; sBv = 36; sC = 40; sD = 44; sXs = 48; sOUT = 52; sDBG = 56
    sX, sJ, sB, sW, sE, sMode = 60, 61, 62, 63, 64, 65
    sT0, sT1, sT2, sT3, sCnt, sSig = 66, 67, 68, 69, 70, 71
    sR0, sR16push, sR16pull, sOSb, sLSb, sQ0, sQ1, sXAo, sXBo = 72, 73, 74, 75, 76, 77, 78, 79, 80
    sSTb, sMsk, sWave = 81, 82, 83
    sM1, sM2, sM3, sMN4 = 84, 86, 88, 90
    sMa, sMb = 92, 94
    sTm = 96
    sXA4, sXB4 = 98, 99
    vL = 1
    vStamp = 15

    nst = [0]
    stamp_names = {}

    def stamp(name):
        if calib and name == 'start':
            E('s_memrealtime s[14:15]\ns_mov_b32 s3, 0')
        if calib and name == calib:
            E('s_memrealtime s[96:97]\ns_waitcnt lgkmcnt(0)\ns_sub_u32 s3, s96, s14')
        if not stamps:
            return
        if dbgst:
            if name not in dbgst and name != 'start':
                return
            idx = 0 if name == 'start' else [2, 3, 4, 5, 6, 7, 10, 11, 12, 13, 14, 15][dbgst.index(name)]
            stamp_names[name] = idx
        else:
            idx = stamp_names.setdefault(name, len(stamp_names))
        E('s_memrealtime s[96:97]\ns_waitcnt lgkmcnt(0)\nv_writelane_b32 v%d, s96, %d' % (vStamp, idx))

    def set_mask(s, val):
        E('s_mov_b32 %s, 0x%x\ns_mov_b32 %s, 0x%x' % (sr(s), val & 0xffffffff, sr(s + 1), val >> 32))

    def srd(d, lo, size):
        E('s_mov_b32 s%d, s%d\ns_mov_b32 s%d, s%d\ns_mov_b32 s%d, %d\ns_mov_b32 s%d, 0x20000' % (d, lo, d + 1, lo + 1, d + 2, size, d + 3))

    def settag(v, u):
        E('s_add_u32 s%d, s%d, %d\ns_and_b32 s%d, s%d, 0xff\nv_mov_b32 v%d, s%d' % (sT0, sE, 1 + u, sT0, sT0, v, sT0))

    def tag(regs, vT):
        for r in regs:
            E('v_and_or_b32 v%d, v%d, s%d, v%d' % (r, r, sMsk, vT))

    def check(regs, vT, acc):
        E('v_xor_b32 v%d, v%d, v%d' % (acc, regs[0], vT))
        for r in regs[1:]:
            E('v_bitop3_b32 v%d, v%d, v%d, v%d bitop3:0xf6' % (acc, acc, r, vT))
        E('v_and_b32 v%d, 0xff, v%d\nv_cmp_ne_u32 vcc, 0, v%d' % (acc, acc, acc))

    def check_sent(regs, acc):
        E('v_max3_u32 v%d, v%d, v%d, v%d' % (acc, regs[0], regs[1], regs[2]))
        rest = regs[3:]
        while len(rest) >= 2:
            E('v_max3_u32 v%d, v%d, v%d, v%d' % (acc, acc, rest[0], rest[1]))
            rest = rest[2:]
        if rest:
            E('v_max_u32 v%d, v%d, v%d' % (acc, acc, rest[0]))
        E('v_cmp_eq_u32 vcc, -1, v%d' % acc)

    def poll(loads, chk):
        top = E.label('Lp'); stub = E.label('Lr')
        E('s_mov_b32 s%d, 0' % sCnt)
        E(top + ':')
        loads()
        E('s_waitcnt vmcnt(0)')
        chk()
        E('s_cbranch_vccnz %s' % stub)
        stubs.append('%s:\ns_add_u32 s%d, s%d, 1\ns_cmp_lt_u32 s%d, 0x8000\ns_cbranch_scc1 %s\ns_branch L_fail' % (stub, sCnt, sCnt, sCnt, top))

    def poll_pipe(nload, nreg, base, loads, chk, dst, stride, D, first, gap):
        top = E.label('Lq'); done = E.label('Ld')
        oks = [E.label('Lo') for _ in range(D)]
        E('s_mov_b32 s%d, 0' % sCnt)
        if first:
            E('s_sleep %d' % first)
        for d in range(D - 1):
            loads(base + d * stride)
            E('s_sleep %d' % gap)
        E(top + ':')
        for d in range(D):
            loads(base + ((d + D - 1) % D) * stride)
            E('s_waitcnt vmcnt(%d)' % ((D - 1) * nload))
            chk(base + d * stride)
            E('s_cbranch_vccz %s' % oks[d])
        E('s_add_u32 s%d, s%d, 1\ns_cmp_lt_u32 s%d, 0x4000\ns_cbranch_scc1 %s\ns_branch L_fail' % (sCnt, sCnt, sCnt, top))
        for d in range(D):
            E(oks[d] + ':')
            for k in range(nreg):
                E('v_mov_b32 v%d, v%d' % (dst + k, base + d * stride + k))
            if d != D - 1:
                E('s_branch %s' % done)
        E(done + ':')

    def lstore(stores, always_sc1=False):
        if always_sc1:
            for s in stores:
                E(s + ' sc1')
            return
        slow = E.label('Ls'); back = E.label('Lb')
        E('s_cmp_eq_u32 s%d, 0\ns_cbranch_scc1 %s' % (sMode, slow))
        for s in stores:
            E(s)
        E(back + ':')
        stubs.append(slow + ':\n' + '\n'.join(s + ' sc1' for s in stores) + '\ns_nop 1\ns_branch ' + back)

    def allred_dpp(op, r):
        E('%s_dpp v%d, v%d, v%d row_ror:4 %s' % (op, r, r, r, DPPM))
        E('%s_dpp v%d, v%d, v%d row_ror:8 %s' % (op, r, r, r, DPPM))

    def allred_rows(op, r, t):
        E('v_mov_b32 v%d, v%d\nv_permlane16_swap_b32 v%d, v%d\n%s v%d, v%d, v%d' % (t, r, r, t, op, r, r, t))
        E('v_mov_b32 v%d, v%d\nv_permlane32_swap_b32 v%d, v%d\n%s v%d, v%d, v%d' % (t, r, r, t, op, r, r, t))

    def quad_reduce(a, b):
        for k in range(4):
            E('v_add_f32 v%d, v%d, v%d' % (a + k, a + k, b + k))
        E('v_permlane32_swap_b32 v%d, v%d\nv_permlane32_swap_b32 v%d, v%d' % (a, a + 2, a + 1, a + 3))
        E('v_add_f32 v%d, v%d, v%d\nv_add_f32 v%d, v%d, v%d' % (a, a, a + 2, a + 1, a + 1, a + 3))
        E('v_permlane16_swap_b32 v%d, v%d\nv_add_f32 v%d, v%d, v%d' % (a, a + 1, a, a, a + 1))
        allred_dpp('v_add_f32', a)

    def common_consts():
        srd(sWS, 26, WS_USED)
        E('s_mul_i32 s%d, s%d, %d\ns_add_u32 s%d, s%d, %d' % (sR0, sX, RX, sR0, sR0, RB))
        E('s_add_u32 s%d, s%d, 4096\ns_add_u32 s%d, s%d, %d' % (sR16push, sR0, sR16pull, sR0, 16 * RU))
        E('s_lshl_b32 s%d, s%d, 16\ns_add_u32 s%d, s%d, %d' % (sOSb, sX, sOSb, sOSb, OS))
        E('s_lshl_b32 s%d, s%d, 9\ns_add_u32 s%d, s%d, %d' % (sLSb, sX, sLSb, sLSb, LS))
        E('s_lshl_b32 s%d, s%d, 12\ns_add_u32 s%d, s%d, %d\ns_add_u32 s%d, s%d, 32768' % (sQ0, sX, sQ0, sQ0, QS, sQ1, sQ0))
        E('s_lshl_b32 s%d, s%d, 10\ns_add_u32 s%d, s%d, %d' % (sSTb, sX, sSTb, sSTb, ST))
        E('s_mov_b32 s%d, %d\ns_mov_b32 s%d, %d' % (sXAo, XA, sXBo, XB))
        E('s_mov_b32 s%d, %d\ns_mov_b32 s%d, %d' % (sXA4, XA + 8192, sXB4, XB + 8192))
        E('s_mov_b32 s%d, 0xffffff00' % sMsk)
        set_mask(sMN4, 0x000F000F000F000F)
        set_mask(sMa, 0x0000000F0000000F)

    def finish_wave():
        E('s_branch L_exit')

    def maybe_stop(name):
        if stop == name:
            finish_wave()
            return True
        return False

    E('s_cmp_ge_u32 s2, 256\ns_cbranch_scc1 L_end')
    E('s_load_dwordx8 s[4:11], s[0:1], 0\ns_load_dwordx2 s[12:13], s[0:1], 32')
    E('s_load_dwordx8 s[16:23], s[0:1], 48\ns_load_dwordx4 s[24:27], s[0:1], 80')
    E('v_lshrrev_b32 v2, 6, v0\nv_and_b32 v1, 63, v0\nv_readfirstlane_b32 s%d, v2' % sWave)
    E('s_and_b32 s%d, s2, 7\ns_lshr_b32 s%d, s2, 3\ns_lshr_b32 s%d, s2, 6' % (sX, sJ, sB))
    E('s_and_b32 s%d, s%d, 3' % (sW, sWave))
    if stamps:
        E('v_mov_b32 v%d, 0' % vStamp)
    stamp('start')
    E('s_cmp_ge_u32 s%d, 4\ns_cbranch_scc1 L_B' % sWave)

    KR = 128
    vKo = [2, 3, 4, 5]; vVo = [6, 7]; vKr = [8, 9, 10, 11]
    E('v_lshrrev_b32 v12, 4, v1\nv_and_b32 v13, 15, v1')
    E('v_xor_b32 v14, v13, v12\nv_lshlrev_b32 v14, 4, v14\nv_lshl_add_u32 v2, v12, 8, v14')
    for k in range(1, 4):
        E('v_xor_b32 v%d, %d, v2' % (vKo[k], 64 * k))
    E('v_lshlrev_b32 v14, 1, v12\nv_xor_b32 v14, v13, v14\nv_lshlrev_b32 v14, 4, v14\nv_lshl_add_u32 v6, v12, 8, v14')
    E('v_xor_b32 v7, 128, v6')
    E('s_lshl_b32 s%d, s%d, 3\ns_add_u32 s%d, s%d, s%d\ns_lshl_b32 s%d, s%d, 22' % (sT0, sB, sT0, sT0, sX, sT0, sT0))
    E('s_and_b32 s%d, s%d, 7\ns_lshl_b32 s%d, s%d, 17\ns_add_u32 s%d, s%d, s%d\ns_add_u32 s%d, s%d, %d' % (sT1, sJ, sT1, sT1, sT0, sT0, sT1, sT0, sT0, 12288 * 256))
    E('s_mul_i32 s%d, s2, %d\ns_add_u32 s%d, s%d, s%d\ns_and_b32 s%d, s%d, 127\ns_lshl_b32 s%d, s%d, 10' % (sT2, rot, sT2, sT2, sW, sT2, sT2, sT2, sT2))
    E('s_lshl_b32 s%d, s%d, 15' % (sT3, sW))
    E('s_waitcnt lgkmcnt(0)')
    E('s_add_u32 s%d, s6, s%d\ns_addc_u32 s%d, s7, 0\ns_mov_b32 s%d, 131072\ns_mov_b32 s%d, 0x20000' % (sA, sT0, sA + 1, sA + 2, sA + 3))
    E('s_add_u32 s%d, s8, s%d\ns_addc_u32 s%d, s9, 0\ns_mov_b32 s%d, 131072\ns_mov_b32 s%d, 0x20000' % (sBv, sT0, sBv + 1, sBv + 2, sBv + 3))
    E('s_load_dword s%d, s[26:27], 0' % sE)
    sOff = sT1

    def kvload(i, srdn, voff):
        E('s_add_u32 m0, s%d, %d' % (sT3, i * 1024))
        if i == 0:
            E('s_mov_b32 s%d, s%d' % (sOff, sT2))
        else:
            E('s_add_u32 s%d, s%d, 4096\ns_and_b32 s%d, s%d, 0x1ffff' % (sOff, sOff, sOff, sOff))
        E('buffer_load_dwordx4 v%d, %s, s%d offen %s lds' % (voff, sr(srdn, 4), sOff, kvpol))

    for i in range(32):
        kvload(i, sA, vKo[i & 3])
        if i == 11:
            E('v_xor_b32 v14, v12, v13\nv_lshlrev_b32 v14, 4, v14\nv_lshl_add_u32 v8, v13, 8, v14\nv_add_u32 v8, s%d, v8' % sT3)
            for c in range(1, 4):
                E('v_xor_b32 v%d, %d, v8' % (vKr[c], 64 * c))
    for t in range(8):
        E('s_waitcnt vmcnt(28)')
        for c in range(4):
            E('ds_read_b128 %s, v%d offset:%d' % (vr(KR + 16 * t + 4 * c, 4), vKr[c], t * 4096))
        E('s_waitcnt lgkmcnt(0)')
        for i in range(4 * t, 4 * t + 4):
            kvload(i, sBv, vVo[i & 1])
    stamp('A_issued')
    common_consts()
    set_mask(sM1, 0x00F000F000F000F0); set_mask(sM2, 0x0F000F000F000F00); set_mask(sM3, 0xF000F000F000F000)
    vVT = [2, 3, 4, 5]
    vPXw, vPXr, vMLa, vQf, vOSw, vLSw = 6, 7, 8, 9, 10, 11
    vRgPush, vRgPull, vXp, vQSw, vSTr, vXpF = 120, 121, 122, 123, 124, 125
    vTg, vAcc = 126, 127
    E('v_lshrrev_b32 v16, 2, v1')
    E('v_and_b32 v17, 7, v16\nv_lshlrev_b32 v17, 1, v17')
    E('v_bfe_u32 v18, v1, 1, 1\ns_lshl_b32 s%d, s%d, 2\nv_add_u32 v18, s%d, v18' % (sT0, sW, sT0))
    E('v_xor_b32 v18, v18, v17\nv_lshlrev_b32 v18, 4, v18\nv_lshl_add_u32 v18, v16, 8, v18')
    E('v_and_b32 v19, 1, v1\nv_lshl_add_u32 v2, v19, 3, v18')
    E('v_xor_b32 v3, 32, v2\nv_add_u32 v4, 0x10000, v2\nv_add_u32 v5, 0x10000, v3')
    E('s_lshl_b32 s%d, s%d, 10\ns_add_u32 s%d, s%d, %d\nv_lshl_add_u32 v%d, v1, 4, s%d' % (sT0, sW, sT0, sT0, LDS_PX, vPXw, sT0))
    E('v_and_b32 v16, 3, v1\nv_lshl_add_u32 v17, v12, 4, v16\nv_lshlrev_b32 v17, 4, v17\nv_add_u32 v%d, %d, v17' % (vPXr, LDS_PX))
    E('v_lshlrev_b32 v17, 3, v1\nv_add_u32 v%d, %d, v17' % (vMLa, LDS_ML))
    E('v_lshlrev_b32 v17, 8, v16\nv_lshl_add_u32 v%d, v12, 4, v17' % vQf)
    E('v_lshlrev_b32 v17, 14, v16\nv_lshl_add_u32 v17, v12, 4, v17')
    E('s_lshl_b32 s%d, s%d, 12\ns_lshl_b32 s%d, s%d, 6\ns_add_u32 s%d, s%d, s%d\nv_add_u32 v%d, s%d, v17' % (sT0, sW, sT1, sJ, sT0, sT0, sT1, vOSw, sT0))
    E('v_lshlrev_b32 v17, 7, v16\ns_lshl_b32 s%d, s%d, 2\nv_add_u32 v%d, s%d, v17' % (sT0, sJ, vLSw, sT0))

    def reducer_addrs(vPush, vPull, vX, vXF, vQ, vS, t0):
        E('v_and_b32 v%d, 3, v1\nv_lshrrev_b32 v%d, 2, v1' % (t0, t0 + 1))
        E('s_lshl_b32 s%d, s%d, 6\nv_lshl_add_u32 v%d, v%d, 4, s%d' % (sT0, sW, t0 + 2, t0, sT0))
        E('s_mul_i32 s%d, s%d, %d\nv_lshl_add_u32 v%d, v%d, 8, v%d\nv_add_u32 v%d, s%d, v%d' % (sT1, sJ, RU, vPush, t0 + 1, t0 + 2, vPush, sT1, vPush))
        if vPull is not None:
            E('v_mul_u32_u24 v%d, %d, v%d\nv_add_u32 v%d, v%d, v%d\ns_lshl_b32 s%d, s%d, 8\nv_add_u32 v%d, s%d, v%d' % (vPull, RU, t0 + 1, vPull, vPull, t0 + 2, sT1, sJ, vPull, sT1, vPull))
        if vX is not None:
            E('v_lshrrev_b32 v%d, 4, v1\nv_lshl_add_u32 v%d, v%d, 2, v%d' % (t0 + 3, t0 + 3, t0 + 3, t0 + 2))
            E('s_lshl_b32 s%d, s%d, 14\ns_lshl_b32 s%d, s%d, 8\ns_add_u32 s%d, s%d, s%d\nv_add_u32 v%d, s%d, v%d' % (sT0, sJ, sT1, sX, sT0, sT0, sT1, t0 + 3, sT0, t0 + 3))
            E('v_and_b32 v%d, 3, v%d\nv_lshl_add_u32 v%d, v%d, 11, v%d' % (vX, t0 + 1, vX, vX, t0 + 3))
            E('s_and_b32 s%d, s%d, 7\ns_lshl_b32 s%d, s%d, 11\nv_add_u32 v%d, s%d, v%d' % (sT0, sJ, sT0, sT0, vXF, sT0, t0 + 3))
        E('v_lshrrev_b32 v%d, 5, v1\nv_lshlrev_b32 v%d, 2, v%d\nv_lshl_add_u32 v%d, v%d, 10, v%d' % (t0 + 3, t0 + 3, t0 + 3, t0 + 3, t0, t0 + 3))
        E('s_lshl_b32 s%d, s%d, 5\ns_lshl_b32 s%d, s%d, 3\ns_add_u32 s%d, s%d, s%d\nv_add_u32 v%d, s%d, v%d' % (sT0, sJ, sT1, sW, sT0, sT0, sT1, vQ, sT0, t0 + 3))
        if vS is not None:
            E('v_lshlrev_b32 v%d, 2, v%d\nv_lshl_add_u32 v%d, v%d, 5, v%d' % (vS, t0, vS, t0 + 1, vS))

    reducer_addrs(vRgPush, vRgPull, vXp, vXpF, vQSw, vSTr, 16)

    QF = 16; SA = 32; PA = 64; PB = 68; PP = 72; TM = 76; CF = 88; vLSE = 92; vM = 93; vLp = 94
    TORD = [0, 2, 4, 6, 1, 3, 5, 7]

    def vfrag_reads(dst, wp, t, e):
        a = vVT[e + 2 * (wp >> 1)]
        off = (wp & 1) * 32768 + t * 8192
        return ['ds_read_b64_tr_b16 %s, v%d offset:%d' % (vr(dst, 2), a, off),
                'ds_read_b64_tr_b16 %s, v%d offset:%d' % (vr(dst + 2, 2), a, off + 4096)]

    FR = [(wp, t, e) for wp in range(4) for t in range(4) for e in range(2)]
    fragreg = {f: KR + 16 * TORD[n // 4] + 4 * (n % 4) for n, f in enumerate(FR)}

    def scores_softmax(phase):
        pend = []
        for k, t in enumerate(TORD):
            for c in range(4):
                E('v_mfma_f32_16x16x32_bf16 %s, %s, %s, %s' % (vr(SA + 4 * t, 4), vr(KR + 16 * t + 4 * c, 4), vr(QF + 4 * c, 4), '0' if c == 0 else vr(SA + 4 * t, 4)))
                for _ in range(2):
                    if pend:
                        E(pend.pop(0))
            if phase == 2:
                for n in range(4 * k, 4 * k + 4):
                    pend += vfrag_reads(fragreg[FR[n]], *FR[n])
            if k == 4:
                pk = []
                for r in range(4):
                    pk.append('v_cndmask_b32 v%d, v%d, v%d, %s' % (PA + r, SA + r, SA + 8 + r, sr(sM1, 2)))
                for r in range(4):
                    pk.append('v_cndmask_b32 v%d, v%d, v%d, %s' % (PA + r, PA + r, SA + 16 + r, sr(sM2, 2)))
                for r in range(4):
                    pk.append('v_cndmask_b32 v%d, v%d, v%d, %s' % (PA + r, PA + r, SA + 24 + r, sr(sM3, 2)))
                pk.append('v_max3_f32 v%d, v%d, v%d, v%d' % (vM, PA, PA + 1, PA + 2))
                pk.append('v_max_f32 v%d, v%d, v%d' % (vM, vM, PA + 3))
                if phase == 2:
                    mix = []
                    while pk or pend:
                        if pend: mix.append(pend.pop(0))
                        if pk: mix.append(pk.pop(0))
                    pend = mix
                else:
                    pend = pk
        for r in range(4):
            E('v_cndmask_b32 v%d, v%d, v%d, %s' % (PB + r, SA + 4 + r, SA + 12 + r, sr(sM1, 2)))
        while pend:
            E(pend.pop(0))
        for r in range(4):
            E('v_cndmask_b32 v%d, v%d, v%d, %s' % (PB + r, PB + r, SA + 20 + r, sr(sM2, 2)))
        for r in range(4):
            E('v_cndmask_b32 v%d, v%d, v%d, %s' % (PB + r, PB + r, SA + 28 + r, sr(sM3, 2)))
        E('v_max3_f32 v%d, v%d, v%d, v%d\nv_max3_f32 v%d, v%d, v%d, v%d' % (vM, vM, PB, PB + 1, vM, vM, PB + 2, PB + 3))
        allred_dpp('v_max_f32', vM)
        allred_rows('v_max_f32', vM, TM)
        E('v_mul_f32_e64 v%d, s%d, -v%d' % (TM, sSig, vM))
        for r in range(8):
            E('v_fma_f32 v%d, v%d, s%d, v%d' % (PA + r, PA + r, sSig, TM))
        for r in range(8):
            E('v_exp_f32 v%d, v%d' % (PA + r, PA + r))
        for r in range(4):
            E('v_cvt_pk_bf16_f32 v%d, v%d, v%d' % (PP + r, PA + 2 * r, PA + 2 * r + 1))
        E('ds_write_b128 v%d, %s' % (vPXw, vr(PP, 4)))
        E('v_add_f32 v%d, v%d, v%d\nv_add_f32 v%d, v%d, v%d' % (TM, PA, PA + 1, TM + 1, PA + 2, PA + 3))
        E('v_add_f32 v%d, v%d, v%d\nv_add_f32 v%d, v%d, v%d' % (TM + 2, PA + 4, PA + 5, TM + 3, PA + 6, PA + 7))
        E('v_add_f32 v%d, v%d, v%d\nv_add_f32 v%d, v%d, v%d\nv_add_f32 v%d, v%d, v%d' % (TM, TM, TM + 1, TM + 2, TM + 2, TM + 3, TM + 5, TM, TM + 2))
        E('v_mov_b32 v%d, v%d' % (TM + 4, vM))
        E('s_lshl_b32 s%d, s%d, 9\nv_add_u32 v%d, s%d, v%d' % (sT0, sW, TM + 6, sT0, vMLa))
        E('ds_write_b64 v%d, %s' % (TM + 6, vr(TM + 4, 2)))

    TC = 84
    MLR = 96

    def coef_reads():
        return ['ds_read_b64 %s, v%d offset:%d' % (vr(MLR + 2 * w, 2), vMLa, 512 * w) for w in range(4)]

    def coef_ops():
        o = []
        o.append('v_max3_f32 v%d, v%d, v%d, v%d' % (vM, MLR, MLR + 2, MLR + 4))
        o.append('v_max_f32 v%d, v%d, v%d' % (vM, vM, MLR + 6))
        for w in range(4):
            o.append('v_sub_f32 v%d, v%d, v%d' % (CF + w, MLR + 2 * w, vM))
        for w in range(4):
            o.append('v_mul_f32 v%d, s%d, v%d' % (CF + w, sSig, CF + w))
        for w in range(4):
            o.append('v_exp_f32 v%d, v%d' % (CF + w, CF + w))
        o.append('v_mul_f32 v%d, v%d, v%d' % (vLp, CF, MLR + 1))
        for w in range(1, 4):
            o.append('v_fmac_f32 v%d, v%d, v%d' % (vLp, CF + w, MLR + 2 * w + 1))
        o.append('v_add_f32_dpp v%d, v%d, v%d row_ror:4 %s' % (vLp, vLp, vLp, DPPM))
        o.append('v_add_f32_dpp v%d, v%d, v%d row_ror:8 %s' % (vLp, vLp, vLp, DPPM))
        for sw in ('16', '32'):
            o.append('v_mov_b32 v%d, v%d' % (TC, vLp))
            o.append('v_permlane%s_swap_b32 v%d, v%d' % (sw, vLp, TC))
            o.append('v_add_f32 v%d, v%d, v%d' % (vLp, vLp, TC))
        o.append('v_rcp_f32 v%d, v%d' % (TC + 1, vLp))
        o.append('v_log_f32 v%d, v%d' % (TC + 2, vLp))
        for w in range(4):
            o.append('v_mul_f32 v%d, v%d, v%d' % (CF + w, CF + w, TC + 1))
        o.append('v_fma_f32 v%d, v%d, s%d, v%d' % (vLSE, vM, sSig, TC + 2))
        return o

    OF = 104

    def publish_O():
        tag(range(OF, OF + 8), vTg)
        E('v_and_or_b32 v%d, v%d, s%d, v%d' % (vLSE, vLSE, sMsk, vTg))
        E('s_mov_b64 exec, %s' % sr(sMN4, 2))
        lstore(['buffer_store_dwordx4 %s, v%d, %s, s%d offen' % (vr(OF, 4), vOSw, sr(sWS, 4), sOSb),
                'buffer_store_dwordx4 %s, v%d, %s, s%d offen offset:2048' % (vr(OF + 4, 4), vOSw, sr(sWS, 4), sOSb)])
        skip = E.label('Lk')
        E('s_cmp_lg_u32 s%d, 0\ns_cbranch_scc1 %s\ns_mov_b64 exec, 15' % (sW, skip))
        lstore(['buffer_store_dword v%d, v%d, %s, s%d offen' % (vLSE, vLSw, sr(sWS, 4), sLSb)])
        E(skip + ':')
        E('s_mov_b64 exec, -1')

    def acc(wp, e):
        return SA + 8 * wp + 4 * e

    def fin_ops(wp):
        o = []
        for e in range(2):
            for r in range(4):
                if wp == 0:
                    o.append('v_mul_f32 v%d, v%d, v%d' % (OF + 4 * e + r, CF, acc(0, e) + r))
                else:
                    o.append('v_fmac_f32 v%d, v%d, v%d' % (OF + 4 * e + r, CF + wp, acc(wp, e) + r))
        return o

    E('s_waitcnt lgkmcnt(0)')
    settag(vTg, 0)
    E('s_barrier')
    stamp('A_b1')
    E('v_add_u32 v16, %d, v%d' % (LDS_Q, vQf))
    E('v_mov_b32 v17, %d\nds_read_b64 %s, v17' % (LDS_SIG, vr(TM, 2)))
    E('v_mov_b32 v%d, v16' % (TM + 8))
    for c in range(4):
        E('ds_read_b128 %s, v%d offset:%d' % (vr(QF + 4 * c, 4), TM + 8, 64 * c))
    E('s_waitcnt lgkmcnt(0)')
    E('v_readfirstlane_b32 s%d, v%d\nv_readfirstlane_b32 s%d, v%d' % (sSig, TM, sMode, TM + 1))
    scores_softmax(1)
    stamp('A_sm1')
    PF = 16
    for t in range(4):
        E('s_waitcnt vmcnt(%d) lgkmcnt(0)' % (24 - 8 * t))
        E('s_barrier')
        if t == 0:
            for s in coef_reads():
                E(s)
        for wp in range(4):
            E('ds_read_b128 %s, v%d offset:%d' % (vr(PF + 4 * wp, 4), vPXr, wp * 1024 + t * 64))
        if t == 0:
            E('s_waitcnt lgkmcnt(4)')
            for s in coef_ops():
                E(s)
        for half in range(2):
            fr = [(wp, e) for wp in (2 * half, 2 * half + 1) for e in range(2)]
            base = 64 if half == 0 else 104
            for n, (wp, e) in enumerate(fr):
                for s in vfrag_reads(base + 4 * n, wp, t, e):
                    E(s)
        for half in range(2):
            fr = [(wp, e) for wp in (2 * half, 2 * half + 1) for e in range(2)]
            base = 64 if half == 0 else 104
            E('s_waitcnt lgkmcnt(%d)' % (8 if half == 0 else 0))
            for n, (wp, e) in enumerate(fr):
                E('v_mfma_f32_16x16x32_bf16 %s, %s, %s, %s' % (vr(acc(wp, e), 4), vr(base + 4 * n, 4), vr(PF + 4 * wp, 4), '0' if t == 0 else vr(acc(wp, e), 4)))
    for wp in range(4):
        for s in fin_ops(wp):
            E(s)
    stamp('A_pv1')
    publish_O()
    E('s_barrier')
    if maybe_stop('OS0'):
        pass
    else:
        RA, RBb = 16, 20

        def red_gather(vaddr, s0, s16, partial=False):
            def loads():
                E('buffer_load_dwordx4 %s, v%d, %s, s%d offen sc1' % (vr(RA, 4), vaddr, sr(sWS, 4), s0))
                if partial:
                    E('s_mov_b64 exec, %s' % sr(sMb, 2))
                E('buffer_load_dwordx4 %s, v%d, %s, s%d offen sc1' % (vr(RBb, 4), vaddr, sr(sWS, 4), s16))
                if partial:
                    E('s_mov_b64 exec, -1')
            poll(loads, lambda: check(list(range(RA, RA + 8)), vTg, vAcc))
            quad_reduce(RA, RBb)

        def xpush(sbase, sbase4, vT2):
            E('v_and_or_b32 v%d, v%d, s%d, v%d' % (RA, RA, sMsk, vT2))
            E('buffer_store_dword v%d, v%d, %s, s%d offen sc1' % (RA, vXp, sr(sWS, 4), sbase))
            E('buffer_store_dword v%d, v%d, %s, s%d offen sc1' % (RA, vXp, sr(sWS, 4), sbase4))

        vT2 = 119; vRs = 118

        def stats_gather(k):
            E('s_add_u32 s%d, s%d, %d' % (sT2, sSTb, 8192 * k))
            settag(28, 0)

            def loads():
                for n, off in enumerate((0, 512, 16, 528)):
                    E('buffer_load_dword v%d, v%d, %s, s%d offen offset:%d sc1' % (24 + n, vSTr, sr(sWS, 4), sT2, off))
            poll(loads, lambda: check([24, 25, 26, 27], 28, vAcc))
            E('v_add_f32 v24, v24, v25\nv_add_f32 v26, v26, v27')
            allred_dpp('v_add_f32', 24); allred_dpp('v_add_f32', 26)
            allred_rows('v_add_f32', 24, 25); allred_rows('v_add_f32', 26, 27)
            E('v_mul_f32 v24, 0x%x, v24' % f32(1 / 512.))
            E('v_mul_f32 v25, v24, v24\nv_mov_b32 v27, 0x%x\nv_fma_f32 v24, v26, v27, -v25' % f32(1 / 512.))
            E('v_max_f32 v24, 0, v24\nv_add_f32 v24, 0x%x, v24' % f32(1e-5))

        set_mask(sMb, 0x0000FFFFFFFFFFFF)

        def ffn_half(layer):
            settag(vTg, 1 + 4 * layer); settag(vT2, layer)
            E('s_barrier')
            stamp('A_a%d' % layer)
            red_gather(vRgPull, sR0, sR16pull)
            xpush(sXAo, sXA4, vT2)
            stamp('A_x%d' % (2 * layer + 1))
            E('s_barrier')
            if maybe_stop('XA%d' % layer):
                return True
            stats_gather(2 * layer)
            E('v_rcp_f32 v%d, v24' % vRs)
            settag(vTg, 3 + 4 * layer)
            for k in range(4):
                E('v_mov_b32 v%d, v%d' % (RBb + k, vTg))
            E('s_barrier')
            stamp('A_c%d' % layer)
            red_gather(vRgPull, sR0, sR16pull, partial=True)
            E('v_mul_f32 v%d, v%d, v%d' % (RA, RA, vRs))
            if layer == 0:
                xpush(sXBo, sXB4, vT2)
            else:
                E('v_and_or_b32 v%d, v%d, s%d, v%d' % (RA, RA, sMsk, vT2))
                E('s_mov_b64 exec, %s' % sr(sMN4, 2))
                E('buffer_store_dword v%d, v%d, %s, s%d offen sc1' % (RA, vXpF, sr(sWS, 4), sXBo))
                E('s_mov_b64 exec, -1')
            stamp('A_x%d' % (2 * layer + 2))
            E('s_barrier')
            return False

        if not ffn_half(0) and not maybe_stop('XB0'):
            settag(vTg, 4)
            E('s_barrier')
            stamp('A_e')
            red_gather(vRgPush, sR0, sR16push)
            E('v_mov_b32 v17, v16\nv_permlane16_swap_b32 v16, v17\nv_cvt_pk_bf16_f32 v16, v16, v17\nv_min_u32 v16, -2, v16')
            E('s_mov_b64 exec, %s' % sr(sMa, 2))
            lstore(['buffer_store_dword v16, v%d, %s, s%d offen' % (vQSw, sr(sWS, 4), sQ1)])
            E('s_mov_b64 exec, -1')
            stamp('A_q1')
            stats_gather(1)
            E('v_rsq_f32 v24, v24\nv_mul_f32 v24, 0x%x, v24\nv_readlane_b32 s%d, v24, s%d' % (f32(SCALE), sSig, sB))
            E('s_lshl_b32 s%d, s%d, 10\ns_add_u32 s%d, s%d, s%d' % (sT2, sB, sT2, sT2, sQ1))
            settag(vTg, 1)

            def qloads():
                for c in range(4):
                    E('buffer_load_dwordx4 %s, v%d, %s, s%d offen offset:%d sc1' % (vr(QF + 4 * c, 4), vQf, sr(sWS, 4), sT2, 64 * c))
            poll(qloads, lambda: check_sent(list(range(QF, QF + 16)), vAcc))
            stamp('A_qg')
            if not maybe_stop('QS1'):
                scores_softmax(2)
                E('s_waitcnt lgkmcnt(0)')
                E('s_barrier')
                stamp('A_b6')
                PFb = [16, 64]
                for t in range(4):
                    E('ds_read_b128 %s, v%d offset:%d' % (vr(PFb[0] + 4 * t, 4), vPXr, t * 64))
                for s in coef_reads():
                    E(s)
                co = coef_ops()
                fill = []
                for wp in range(4):
                    pf = PFb[wp & 1]
                    nxt = []
                    if wp < 3:
                        nxt = ['ds_read_b128 %s, v%d offset:%d' % (vr(PFb[(wp + 1) & 1] + 4 * t, 4), vPXr, (wp + 1) * 1024 + t * 64) for t in range(4)]
                    if wp == 0:
                        E('s_waitcnt lgkmcnt(4)')
                    else:
                        E('s_waitcnt lgkmcnt(0)')
                    k = 0
                    for t in range(4):
                        for e in range(2):
                            E('v_mfma_f32_16x16x32_bf16 %s, %s, %s, %s' % (vr(acc(wp, e), 4), vr(fragreg[(wp, t, e)], 4), vr(pf + 4 * t, 4), '0' if t == 0 else vr(acc(wp, e), 4)))
                            k += 1
                            if wp == 0 and k == 1:
                                E('s_waitcnt lgkmcnt(0)')
                                fill = list(co)
                            if k >= 2 and nxt:
                                E(nxt.pop(0))
                            for _ in range(2):
                                if fill:
                                    E(fill.pop(0))
                    if wp == 1:
                        while fill:
                            E(fill.pop(0))
                        fill = fin_ops(0)
                    elif wp == 2:
                        fill = fill + fin_ops(1) + fin_ops(2)
                while fill:
                    E(fill.pop(0))
                for s in fin_ops(3):
                    E(s)
                stamp('A_pv2')
                publish_O()
                E('s_barrier')
                if not maybe_stop('OS1'):
                    ffn_half(1)
        finish_wave()

    E('L_B:')
    E('s_setprio 3')
    WQ, WG, WO, WD = 128, 144, 160, 176
    XRES, ACT = 208, 212
    DA = 216
    vW4 = 2
    E('v_lshrrev_b32 v12, 4, v1\nv_and_b32 v13, 15, v1\nv_and_b32 v14, 3, v1')
    E('v_lshlrev_b32 v3, 4, v13\nv_lshl_add_u32 v2, v12, 13, v3')
    E('v_lshl_add_u32 v4, v12, 10, v3')
    E('v_lshrrev_b32 v5, 3, v1\nv_and_b32 v6, 7, v1\nv_mul_u32_u24 v5, 3584, v5\nv_lshl_add_u32 v5, v6, 4, v5')
    E('v_lshrrev_b32 v7, 2, v1\nv_lshlrev_b32 v7, 6, v7\nv_lshl_add_u32 v7, v14, 10, v7')
    E('v_lshlrev_b32 v8, 3, v12\nv_lshl_add_u32 v8, v14, 10, v8\ns_lshl_b32 s%d, s%d, 5\nv_add_u32 v8, s%d, v8' % (sT0, sJ, sT0))
    E('s_lshl_b32 s%d, s%d, 12' % (sT3, sW))
    E('v_lshrrev_b32 v9, 5, v1\nv_lshlrev_b32 v9, 15, v9\nv_bfe_u32 v10, v1, 3, 2\nv_lshl_add_u32 v9, v10, 10, v9\nv_lshl_add_u32 v9, v6, 2, v9')
    E('s_lshl_b32 s%d, s%d, 5\ns_lshl_b32 s%d, s%d, 12\ns_add_u32 s%d, s%d, s%d\ns_add_u32 s%d, s%d, %d\nv_mov_b32 v10, -1' % (sT0, sJ, sT1, sX, sT0, sT0, sT1, sT0, sT0, QS))
    E('s_waitcnt lgkmcnt(0)')
    E('s_load_dword s%d, s[26:27], 0' % sE)
    srd(sWS, 26, WS_USED)
    srd(sXs, 4, 4096); srd(sA, 10, 4194304); srd(sBv, 16, 1835008); srd(sC, 18, 1835008)
    skip = E.label('Lk')
    E('s_cmp_lg_u32 s%d, 0\ns_cbranch_scc1 %s' % (sW, skip))
    E('buffer_store_dword v10, v9, %s, s%d offen sc1' % (sr(sWS, 4), sT0))
    E(skip + ':')
    for k in range(4):
        E('buffer_load_dwordx4 %s, v7, %s, 0 offen offset:%d' % (vr(16 + 4 * k, 4), sr(sXs, 4), 16 * k))
    E('buffer_load_dwordx2 v[32:33], v8, %s, 0 offen' % sr(sXs, 4))
    E('s_lshl_b32 s%d, s%d, 17\ns_lshl_b32 s%d, s%d, 10\ns_add_u32 s%d, s%d, s%d\ns_lshl_b32 s%d, s%d, 8\ns_add_u32 s%d, s%d, s%d' % (sT0, sJ, sT1, sX, sT0, sT0, sT1, sT1, sW, sT0, sT0, sT1))
    for i in range(4):
        E('s_add_u32 m0, s%d, %d\ns_add_u32 s%d, s%d, %d' % (sT3, S0 + 1024 * i, sT1, sT0, i * 4 * 8192))
        E('buffer_load_dwordx4 v2, %s, s%d offen %s lds' % (sr(sA, 4), sT1, wpol))
    E('s_mul_i32 s%d, s%d, %d\ns_mul_i32 s%d, s%d, 448\ns_add_u32 s%d, s%d, s%d\ns_lshl_b32 s%d, s%d, 7\ns_add_u32 s%d, s%d, s%d' % (sT0, sJ, 16 * 3584, sT1, sX, sT0, sT0, sT1, sT1, sW, sT0, sT0, sT1))
    set_mask(sM1, 0x0F0F0F0F0F0F0F0F)
    E('s_cmp_eq_u32 s%d, 3\ns_cselect_b64 exec, %s, -1' % (sW, sr(sM1, 2)))
    for mtx in range(2):
        for i in range(2):
            E('s_add_u32 m0, s%d, %d\ns_add_u32 s%d, s%d, %d' % (sT3, S1 + 2048 * mtx + 1024 * i, sT1, sT0, i * 8 * 3584))
            E('buffer_load_dwordx4 v5, %s, s%d offen %s lds' % (sr(sBv if mtx == 0 else sC, 4), sT1, wpol))
    E('s_mov_b64 exec, -1')
    common_consts()
    srd(sOUT, 22, 4096); srd(sDBG, 24, 256); srd(sD, 20, 1835008)
    bPush, bQSw = 100, 101
    reducer_addrs(bPush, None, None, None, bQSw, None, 40)
    bTrW, bTrG, bTrD = 102, 103, 104
    bSPush, bSPull, bXr, bOSr, bLSr, bRG, bSTw, bCSw, bCSr, bCMw, bCMr, bOut, bRDs = range(105, 118)
    bTg, bAcc, bT2, bGW, bL16 = 118, 119, 120, 121, 122
    E('v_bfe_u32 v41, v1, 2, 2')
    E('v_lshlrev_b32 v42, 3, v14\nv_lshl_add_u32 v42, v12, 5, v42')
    E('v_lshl_add_u32 v%d, v41, 8, v42\nv_add_u32 v%d, s%d, v%d' % (bTrW, bTrW, sT3, bTrW))
    E('v_and_b32 v43, 1, v14\nv_lshlrev_b32 v43, 3, v43\nv_lshl_add_u32 v43, v12, 4, v43\nv_lshrrev_b32 v44, 1, v14\nv_lshl_add_u32 v43, v44, 11, v43')
    E('v_lshl_add_u32 v%d, v41, 7, v43\nv_add_u32 v%d, s%d, v%d\nv_add_u32 v%d, %d, v%d' % (bTrG, bTrG, sT3, bTrG, bTrG, S1, bTrG))
    E('v_and_b32 v43, 1, v41\nv_lshlrev_b32 v43, 1, v43\nv_lshrrev_b32 v44, 1, v41\nv_or_b32 v43, v43, v44')
    E('v_lshl_add_u32 v%d, v43, 10, v42\nv_add_u32 v%d, %d, v%d' % (bTrD, bTrD, LDS_WD, bTrD))
    E('v_add_u32 v%d, %d, v%d' % (bTrW, S0, bTrW))
    E('s_lshl_b32 s%d, s%d, 3\nv_add_u32 v43, s%d, v12' % (sT0, sW, sT0))
    E('v_mul_u32_u24 v%d, %d, v43\nv_add_u32 v%d, v%d, v3\ns_lshl_b32 s%d, s%d, 8\nv_add_u32 v%d, s%d, v%d' % (bSPush, RU, bSPush, bSPush, sT1, sJ, bSPush, sT1, bSPush))
    E('s_mul_i32 s%d, s%d, %d\nv_lshl_add_u32 v%d, v43, 8, v3\nv_add_u32 v%d, s%d, v%d' % (sT1, sJ, RU, bSPull, bSPull, sT1, bSPull))
    E('v_lshlrev_b32 v%d, 4, v1\nv_add_u32 v%d, s%d, v%d' % (bRDs, bRDs, sT1, bRDs))
    E('v_lshlrev_b32 v44, 4, v14\nv_lshl_add_u32 v44, v41, 5, v44\nv_lshl_add_u32 v44, v43, 12, v44\ns_lshl_b32 s%d, s%d, 7\nv_add_u32 v%d, s%d, v44' % (sT0, sJ, bCSw, sT0))
    E('v_lshrrev_b32 v44, 2, v1\nv_lshlrev_b32 v44, 7, v44\nv_and_b32 v45, 1, v14\nv_lshl_add_u32 v44, v45, 4, v44\ns_lshl_b32 s%d, s%d, 12\ns_lshl_b32 s%d, s%d, 5\ns_add_u32 s%d, s%d, s%d\nv_add_u32 v%d, s%d, v44' % (sT0, sJ, sT1, sW, sT0, sT0, sT1, bCSr, sT0))
    E('v_lshlrev_b32 v44, 2, v12\nv_lshl_add_u32 v44, v14, 11, v44\ns_lshl_b32 s%d, s%d, 6\ns_lshl_b32 s%d, s%d, 4\ns_add_u32 s%d, s%d, s%d\nv_add_u32 v%d, s%d, v44' % (sT0, sJ, sT1, sW, sT0, sT0, sT1, bCMw, sT0))
    E('s_lshl_b32 s%d, s%d, 9\nv_lshl_add_u32 v%d, v1, 2, s%d' % (sT0, sW, bCMr, sT0))
    E('v_lshlrev_b32 v44, 4, v14\nv_lshl_add_u32 v44, v12, 6, v44\nv_lshl_add_u32 v45, v41, 8, v44')
    E('s_lshl_b32 s%d, s%d, 3\ns_add_u32 s%d, s%d, s%d\ns_lshl_b32 s%d, s%d, 11\nv_add_u32 v%d, s%d, v45' % (sT0, sJ, sT0, sT0, sX, sT0, sT0, bXr, sT0))
    E('s_mul_i32 s%d, s%d, %d\nv_add_u32 v%d, s%d, v45' % (sT1, sJ, RU, bRG, sT1))
    E('v_lshl_add_u32 v44, v14, 3, v41\nv_lshlrev_b32 v45, 4, v12\nv_lshl_add_u32 v45, v44, 6, v45\ns_lshl_b32 s%d, s%d, 11\nv_add_u32 v%d, s%d, v45' % (sT0, sJ, bOSr, sT0))
    E('s_lshl_b32 s%d, s%d, 7\nv_lshl_add_u32 v%d, v44, 2, s%d' % (sT0, sB, bLSr, sT0))
    E('v_lshrrev_b32 v44, 5, v1\nv_lshlrev_b32 v44, 4, v44\nv_lshl_add_u32 v44, v14, 2, v44\ns_lshl_b32 s%d, s%d, 5\nv_add_u32 v%d, s%d, v44' % (sT0, sJ, bSTw, sT0))
    E('v_mov_b32 v%d, v8' % bOut)
    E('s_lshl_b32 s%d, s%d, 5\nv_mov_b32 v%d, s%d\nv_lshlrev_b32 v%d, 4, v1' % (sT0, sX, bGW, sT0, bL16))
    sCSb, sCMb, sR4push = sM2, sM2 + 1, sM3
    E('s_lshl_b32 s%d, s%d, 17\ns_add_u32 s%d, s%d, %d' % (sCSb, sX, sCSb, sCSb, CSA))
    E('s_lshl_b32 s%d, s%d, 12\ns_add_u32 s%d, s%d, %d' % (sCMb, sX, sCMb, sCMb, CM))
    E('s_add_u32 s%d, s%d, %d' % (sR4push, sR0, 4 * RU))

    E('s_waitcnt vmcnt(8) lgkmcnt(0)')
    skip = E.label('Lk')
    E('s_cmp_lg_u32 s%d, 0\ns_cbranch_scc1 %s' % (sW, skip))
    E('v_lshlrev_b32 v44, 7, v1\ns_lshl_b32 s%d, s%d, 2\nv_add_u32 v44, s%d, v44\nv_mov_b32 v45, s%d\ns_mov_b64 exec, 15' % (sT0, sJ, sT0, sE))
    E('buffer_store_dword v45, v44, %s, s%d offen sc1\ns_mov_b64 exec, -1' % (sr(sWS, 4), sLSb))
    E(skip + ':')
    E('v_mov_b32 v34, 0x3f803f80\nv_mov_b32 v35, 0\nv_mov_b32 v36, 0')
    for k in range(16):
        E('v_dot2_f32_bf16 v35, v%d, v34, v35' % (16 + k))
    for k in range(16):
        E('v_dot2_f32_bf16 v36, v%d, v%d, v36' % (16 + k, 16 + k))
    allred_dpp('v_add_f32', 35); allred_rows('v_add_f32', 35, 37)
    allred_dpp('v_add_f32', 36); allred_rows('v_add_f32', 36, 37)
    E('v_mul_f32 v35, 0x%x, v35' % f32(1 / 512.))
    E('v_mul_f32 v37, v35, v35\nv_mov_b32 v38, 0x%x\nv_fma_f32 v36, v36, v38, -v37' % f32(1 / 512.))
    E('v_max_f32 v36, 0, v36\nv_add_f32 v36, 0x%x, v36\nv_rsq_f32 v36, v36\nv_mul_f32 v36, 0x%x, v36' % (f32(1e-5), f32(SCALE)))
    E('v_readlane_b32 s%d, v36, s%d' % (sSig, sB))

    def unpack_x(src):
        E('v_lshlrev_b32 v%d, 16, v%d\nv_and_b32 v%d, 0xffff0000, v%d' % (XRES, src, XRES + 1, src))
        E('v_lshlrev_b32 v%d, 16, v%d\nv_and_b32 v%d, 0xffff0000, v%d' % (XRES + 2, src + 1, XRES + 3, src + 1))
    unpack_x(32)
    for k in range(4):
        E('v_sub_f32 v%d, v%d, v35' % (16 + k, XRES + k))
    E('v_cvt_pk_bf16_f32 v%d, v16, v17\nv_cvt_pk_bf16_f32 v%d, v18, v19' % (ACT, ACT + 1))

    def wreg(W, t, k):
        return W + 8 * t + 2 * k

    def tr_std(W, base_off):
        for t in range(2):
            for k in range(4):
                E('ds_read_b64_tr_b16 %s, v%d offset:%d' % (vr(wreg(W, t, k), 2), bTrW, base_off + 1024 * k + 128 * t))

    def gemv16(W, act, d0):
        for k in range(4):
            for t in range(2):
                E('v_mfma_f32_4x4x4_16b_bf16 %s, %s, %s, %s blgp:%d' % (vr(d0 + 4 * t, 4), vr(wreg(W, t, k), 2), vr(act, 2), '0' if k == 0 else vr(d0 + 4 * t, 4), 4 + k))

    def push_stores(d0, second=True):
        o = ['buffer_store_dwordx4 %s, v%d, %s, s%d offen' % (vr(d0, 4), bSPush, sr(sWS, 4), sR0)]
        if second:
            o.append('buffer_store_dwordx4 %s, v%d, %s, s%d offen' % (vr(d0 + 4, 4), bSPush, sr(sWS, 4), sR4push))
        return o

    E('s_waitcnt vmcnt(4) lgkmcnt(0)')
    stamp('B_wq')
    tr_std(WQ, 0)
    settag(bTg, 0)
    E('s_waitcnt lgkmcnt(0)')
    gemv16(WQ, ACT, DA)
    tag(range(DA, DA + 8), bTg)
    lstore(push_stores(DA), always_sc1=True)
    E('s_waitcnt vmcnt(2)')
    for t in range(2):
        for k in range(4):
            E('ds_read_b64_tr_b16 %s, v%d offset:%d' % (vr(wreg(WG, t, k), 2), bTrG, 512 * k + 64 * t))
    E('v_mov_b32 v20, 0x3f803f80\nv_mov_b32 v21, 0x3f803f80')
    gemv16(WQ, 20, DA + 8)
    E('s_waitcnt lgkmcnt(0)')
    gemv16(WG, 20, DA + 16)
    set_mask(sM1, 0x2222222222222222)
    for k in range(8):
        E('v_cndmask_b32 v%d, v%d, v%d, %s' % (DA + 8 + k, DA + 8 + k, DA + 16 + k, sr(sM1, 2)))
    tag(range(DA + 8, DA + 16), bTg)
    set_mask(sM1, 0x3333333333333333)
    E('s_add_u32 s%d, s%d, 16384' % (sT2, sCSb))
    E('s_mov_b64 exec, %s' % sr(sM1, 2))
    E('buffer_store_dwordx4 %s, v%d, %s, s%d offen sc1' % (vr(DA + 8, 4), bCSw, sr(sWS, 4), sCSb))
    E('buffer_store_dwordx4 %s, v%d, %s, s%d offen sc1' % (vr(DA + 12, 4), bCSw, sr(sWS, 4), sT2))
    E('s_mov_b64 exec, -1')
    E('s_getreg_b32 s%d, hwreg(HW_REG_XCC_ID, 0, 4)\ns_and_b32 s%d, s%d, 7\ns_lshl_b32 s%d, s%d, 3' % (sT0, sT0, sT0, sT0, sT0))
    E('s_mov_b64 s[100:101], 1\ns_lshl_b64 s[100:101], s[100:101], s%d' % sT0)
    skip = E.label('Lk')
    E('s_cmp_lg_u32 s%d, 0\ns_cbranch_scc1 %s' % (sW, skip))
    E('v_mov_b32 v22, s100\nv_mov_b32 v23, s101')
    E('s_mov_b64 exec, 1\nbuffer_atomic_add_x2 v[22:23], v%d, %s, 0 offen\ns_mov_b64 exec, -1' % (bGW, sr(sDBG, 4)))
    E(skip + ':')
    stamp('B_rq0')

    RES = DA + 16

    def alpha(gw):
        def l_a(b):
            if gw:
                E('s_mov_b64 exec, 1\nbuffer_load_dwordx2 %s, v%d, %s, 0 offen sc1\ns_mov_b64 exec, -1' % (vr(b + 8, 2), bGW, sr(sDBG, 4)))
            E('buffer_load_dwordx4 %s, v%d, %s, s%d offen sc1' % (vr(b, 4), bPush, sr(sWS, 4), sR0))
            E('buffer_load_dwordx4 %s, v%d, %s, s%d offen sc1' % (vr(b + 4, 4), bPush, sr(sWS, 4), sR16push))

        def c_a(b):
            check(list(range(b, b + 8)), bTg, bAcc)
            if gw:
                E('s_mov_b64 %s, vcc\ns_mov_b64 exec, 1' % sr(sM1, 2))
                E('v_sad_u8 v%d, v%d, 0, 0\nv_sad_u8 v%d, v%d, 0, v%d\nv_cmp_ne_u32 vcc, 32, v%d' % (bAcc, b + 8, bAcc, b + 9, bAcc, bAcc))
                E('s_mov_b64 exec, -1\ns_or_b64 vcc, vcc, %s' % sr(sM1, 2))
        poll_pipe(3 if gw else 2, 10 if gw else 8, 16, l_a, c_a, RES, 12, 2, afirst, agap)
    w0 = E.label('Lw'); join = E.label('Lj')
    E('s_cmp_eq_u32 s%d, 0\ns_cbranch_scc1 %s' % (sW, w0))
    alpha(False)
    E('s_branch %s' % join)
    E(w0 + ':')
    alpha(True)
    E('v_readfirstlane_b32 s%d, v%d\nv_readfirstlane_b32 s%d, v%d' % (sT0, RES + 8, sT1, RES + 9))
    E('s_lshl_b64 s[100:101], s[100:101], 5')
    E('s_xor_b32 s%d, s%d, s100\ns_xor_b32 s%d, s%d, s101\ns_or_b32 s%d, s%d, s%d\ns_cmp_eq_u32 s%d, 0\ns_cselect_b32 s%d, 1, 0' % (sT0, sT0, sT1, sT1, sT0, sT0, sT1, sT0, sMode))
    if force_slow:
        E('s_mov_b32 s%d, 0' % sMode)
    E(join + ':')
    quad_reduce(RES, RES + 4)
    E('v_mov_b32 v%d, v%d\nv_permlane16_swap_b32 v%d, v%d\nv_cvt_pk_bf16_f32 v%d, v%d, v%d\nv_min_u32 v%d, -2, v%d' % (RES + 1, RES, RES, RES + 1, RES, RES, RES + 1, RES, RES))
    E('s_mov_b64 exec, %s' % sr(sMa, 2))
    E('buffer_store_dword v%d, v%d, %s, s%d offen sc1' % (RES, bQSw, sr(sWS, 4), sQ0))
    E('s_mov_b64 exec, -1')
    stamp('B_q0')

    def wo_wd_loads():
        srd(sA, 12, 4194304)
        E('s_lshl_b32 s%d, s%d, 19\ns_lshl_b32 s%d, s%d, 14\ns_add_u32 s%d, s%d, s%d\ns_lshl_b32 s%d, s%d, 8\ns_add_u32 s%d, s%d, s%d' % (sT0, sX, sT1, sJ, sT0, sT0, sT1, sT1, sW, sT0, sT0, sT1))
        for i in range(4):
            E('s_add_u32 m0, s%d, %d\ns_add_u32 s%d, s%d, %d' % (sT3, S1 + 1024 * i, sT1, sT0, i * 4096))
            E('buffer_load_dwordx4 v4, %s, s%d offen %s lds' % (sr(sA, 4), sT1, wpol))
        skip = E.label('Lk')
        E('s_cmp_lg_u32 s%d, 3\ns_cbranch_scc1 %s\ns_cmp_ge_u32 s%d, 28\ns_cbranch_scc1 %s' % (sW, skip, sJ, skip))
        E('s_mul_i32 s%d, s%d, %d\ns_lshl_b32 s%d, s%d, 13\ns_add_u32 s%d, s%d, s%d' % (sT0, sX, 224 * 1024, sT1, sJ, sT0, sT0, sT1))
        for i in range(8):
            E('s_mov_b32 m0, %d\ns_add_u32 s%d, s%d, %d' % (LDS_WD + 1024 * i, sT1, sT0, i * 1024))
            E('buffer_load_dwordx4 v%d, %s, s%d offen %s lds' % (bL16, sr(sD, 4), sT1, wpol))
        E(skip + ':')

    if not late:
        wo_wd_loads()
    CSR = 64
    sCS2 = sM3 + 1
    E('s_add_u32 s%d, s%d, 2048' % (sCS2, sCSb))

    def l_cs():
        E('buffer_load_dwordx4 %s, v%d, %s, s%d offen sc1' % (vr(CSR, 4), bCSr, sr(sWS, 4), sCSb))
        E('buffer_load_dwordx4 %s, v%d, %s, s%d offen sc1' % (vr(CSR + 4, 4), bCSr, sr(sWS, 4), sCS2))
    l_cs()
    skip = E.label('Lk')
    E('s_cmp_lg_u32 s%d, 0\ns_cbranch_scc1 %s' % (sW, skip))
    E('s_lshl_b32 s%d, s%d, 10\ns_add_u32 s%d, s%d, s%d' % (sT2, sB, sT2, sT2, sQ0))
    poll_pipe(1, 4, 40, lambda b: E('buffer_load_dwordx4 %s, v%d, %s, s%d offen sc1' % (vr(b, 4), bL16, sr(sWS, 4), sT2)),
              lambda b: check_sent(list(range(b, b + 4)), bAcc), RES, 4, 5, bfirst, bgap)
    E('v_add_u32 v9, %d, v%d\nds_write_b128 v9, %s' % (LDS_Q, bL16, vr(RES, 4)))
    E('v_mov_b32 v9, %d\nv_mov_b32 v10, s%d\nv_mov_b32 v11, s%d\nds_write_b64 v9, v[10:11]' % (LDS_SIG, sSig, sMode))
    stamp('B_qg0')
    E(skip + ':')
    ok = E.label('Lo')
    E('s_cmp_lg_u32 s%d, 0\ns_cbranch_scc0 %s\ns_waitcnt vmcnt(0)\n%s:' % (sW, ok, ok))
    check(list(range(CSR, CSR + 8)), bTg, bAcc)
    ok = E.label('Lo')
    E('s_cbranch_vccz %s' % ok)
    poll(l_cs, lambda: check(list(range(CSR, CSR + 8)), bTg, bAcc))
    E(ok + ':')
    quad_reduce(CSR, CSR + 4)
    E('v_mul_f32 v%d, 0x%x, v%d' % (CSR, f32(1 / 512.), CSR))
    tag([CSR], bTg)
    set_mask(sM1, 0x0003000300030003)
    E('s_mov_b64 exec, %s' % sr(sM1, 2))
    E('buffer_store_dword v%d, v%d, %s, s%d offen sc1' % (CSR, bCMw, sr(sWS, 4), sCMb))
    E('s_mov_b64 exec, -1')

    def centre():
        settag(bTg, 0)

        def l_cm():
            for n, off in enumerate((0, 256, 2048, 2304)):
                E('buffer_load_dword v%d, v%d, %s, s%d offen offset:%d sc1' % (16 + n, bCMr, sr(sWS, 4), sCMb, off))
        poll(l_cm, lambda: check([16, 17, 18, 19], bTg, bAcc))
        for n, W in ((1, WG), (0, WQ)):
            for t in range(2):
                cmr = 16 + 2 * n + t
                for k in range(4):
                    for hh in range(2):
                        r = wreg(W, t, k) + hh
                        E('v_lshlrev_b32 v124, 16, v%d\nv_and_b32 v125, 0xffff0000, v%d' % (r, r))
                        E('v_sub_f32 v124, v124, v%d\nv_sub_f32 v125, v125, v%d\nv_cvt_pk_bf16_f32 v%d, v124, v125' % (cmr, cmr, r))
        stamp('B_ctr')
    E('s_waitcnt lgkmcnt(0)')
    stamp('B_init')
    E('s_barrier')
    E('v_mov_b32 v9, %d\nds_read_b32 v10, v9 offset:4\ns_waitcnt lgkmcnt(0)\nv_readfirstlane_b32 s%d, v10' % (LDS_SIG, sMode))
    if late:
        wo_wd_loads()
    for _ in range(4):
        E('s_barrier')
    E('s_waitcnt vmcnt(0)')
    tr_std(WO, S1 - S0)
    skip = E.label('Lk')
    E('s_cmp_lg_u32 s%d, 3\ns_cbranch_scc1 %s' % (sW, skip))
    for t in range(8):
        for q in range(2):
            E('ds_read_b64_tr_b16 %s, v%d offset:%d' % (vr(WD + 4 * t + 2 * q, 2), bTrD, 4096 * q + 128 * t))
    E(skip + ':')
    E('s_waitcnt lgkmcnt(0)')
    stamp('B_w')

    def oproj(layer):
        settag(bTg, layer); settag(bT2, 1 + 4 * layer)
        E('s_barrier')
        stamp('B_f%d' % layer)
        if stop == 'OS%d' % layer:
            return True

        def loads():
            E('buffer_load_dword v24, v%d, %s, s%d offen sc1\nbuffer_load_dword v25, v%d, %s, s%d offen offset:16 sc1' % (bLSr, sr(sWS, 4), sLSb, bLSr, sr(sWS, 4), sLSb))
            E('buffer_load_dwordx4 v[16:19], v%d, %s, s%d offen sc1\nbuffer_load_dwordx4 v[20:23], v%d, %s, s%d offen offset:256 sc1' % (bOSr, sr(sWS, 4), sOSb, bOSr, sr(sWS, 4), sOSb))
        poll(loads, lambda: check(list(range(16, 26)), bTg, bAcc))
        stamp('B_og%d' % layer)
        E('v_max_f32 v26, v24, v25')
        allred_dpp('v_max_f32', 26)
        E('v_sub_f32 v24, v24, v26\nv_sub_f32 v25, v25, v26\nv_exp_f32 v24, v24\nv_exp_f32 v25, v25')
        for k in range(4):
            E('v_mul_f32 v%d, v24, v%d' % (16 + k, 16 + k))
        E('v_add_f32 v26, v24, v25')
        for k in range(4):
            E('v_fmac_f32 v%d, v25, v%d' % (16 + k, 20 + k))
        for ro in (4, 8):
            E('v_add_f32_dpp v26, v26, v26 row_ror:%d %s' % (ro, DPPM))
            for k in range(4):
                E('v_add_f32_dpp v%d, v%d, v%d row_ror:%d %s' % (16 + k, 16 + k, 16 + k, ro, DPPM))
        E('v_rcp_f32 v26, v26')
        for k in range(4):
            E('v_mul_f32 v%d, v%d, v26' % (16 + k, 16 + k))
        E('v_cvt_pk_bf16_f32 v%d, v16, v17\nv_cvt_pk_bf16_f32 v%d, v18, v19' % (ACT, ACT + 1))
        gemv16(WO, ACT, DA)
        tag(range(DA, DA + 8), bT2)
        lstore(['buffer_store_dwordx4 %s, v%d, %s, s%d offen' % (vr(DA, 4), bSPull, sr(sWS, 4), sR0),
                'buffer_store_dwordx4 %s, v%d, %s, s%d offen offset:1024' % (vr(DA + 4, 4), bSPull, sr(sWS, 4), sR0)])
        stamp('B_ro%d' % layer)
        E('s_barrier')
        if layer == 0:
            centre()
        return False

    def xr(sbase):
        if xdelay:
            E('s_sleep %d' % xdelay)

        def loads():
            E('buffer_load_dwordx4 v[16:19], v%d, %s, s%d offen sc1\nbuffer_load_dwordx4 v[20:23], v%d, %s, s%d offen offset:1024 sc1' % (bXr, sr(sWS, 4), sbase, bXr, sr(sWS, 4), sbase))
        poll(loads, lambda: check(list(range(16, 24)), bTg, bAcc))
        for k in range(4):
            E('v_add_f32 v%d, v%d, v%d' % (16 + k, 16 + k, 20 + k))
        for ro in (4, 8):
            for k in range(4):
                E('v_add_f32_dpp v%d, v%d, v%d row_ror:%d %s' % (16 + k, 16 + k, 16 + k, ro, DPPM))
        for k in range(4):
            E('v_add_f32 v%d, v%d, v%d' % (16 + k, 16 + k, XRES + k))
        E('v_cvt_pk_bf16_f32 v%d, v16, v17\nv_cvt_pk_bf16_f32 v%d, v18, v19' % (ACT, ACT + 1))

    def publish_stats(k):
        unpack_x(ACT)
        skip = E.label('Lk')
        E('s_cmp_lg_u32 s%d, 2\ns_cbranch_scc1 %s' % (sW, skip))
        E('v_add_f32 v30, v%d, v%d\nv_add_f32 v31, v%d, v%d\nv_add_f32 v30, v30, v31' % (XRES, XRES + 1, XRES + 2, XRES + 3))
        E('v_mul_f32 v31, v%d, v%d' % (XRES, XRES))
        for q in range(1, 4):
            E('v_fmac_f32 v31, v%d, v%d' % (XRES + q, XRES + q))
        E('v_permlane32_swap_b32 v30, v31\nv_add_f32 v30, v30, v31\nv_mov_b32 v31, v30\nv_permlane16_swap_b32 v30, v31\nv_add_f32 v30, v30, v31')
        settag(31, 0)
        tag([30], 31)
        E('s_add_u32 s%d, s%d, %d' % (sT2, sSTb, 8192 * k))
        E('s_mov_b64 exec, %s' % sr(sMa, 2))
        lstore(['buffer_store_dword v30, v%d, %s, s%d offen' % (bSTw, sr(sWS, 4), sT2)])
        E('s_mov_b64 exec, -1')
        E(skip + ':')

    def ffn(layer):
        settag(bTg, layer); settag(bT2, 2 + 4 * layer)
        E('s_barrier')
        if stop == 'XA%d' % layer:
            return True
        xr(sXAo)
        stamp('B_xr%d' % (2 * layer + 1))
        gemv16(WG, ACT, DA)
        tag(range(DA, DA + 8), bT2)
        w3 = E.label('Lw'); join = E.label('Lj')
        E('s_cmp_eq_u32 s%d, 3\ns_cbranch_scc1 %s' % (sW, w3))
        lstore(push_stores(DA))
        publish_stats(2 * layer)
        E('s_branch %s' % join)
        E(w3 + ':')
        lstore(push_stores(DA, second=False))
        stamp('B_rg%d' % layer)
        unpack_x(ACT)
        E('s_cmp_ge_u32 s%d, 28\ns_cbranch_scc1 %s' % (sJ, join))
        settag(bTg, 3 + 4 * layer)

        def loads():
            for i in range(8):
                E('buffer_load_dwordx4 %s, v%d, %s, s%d offen offset:%d sc1' % (vr(16 + 4 * i, 4), bRG, sr(sWS, 4), sR0 if i < 4 else sR16push, 1024 * (i & 3)))
        poll(loads, lambda: check([16 + 4 * i for i in range(8)], bT2, bAcc))
        stamp('B_gg%d' % layer)
        for st in (16, 8, 4):
            for i in range(st):
                E('v_add_f32 v%d, v%d, v%d' % (16 + i, 16 + i, 16 + st + i))
        for ro in (4, 8):
            for k in range(4):
                E('v_add_f32_dpp v%d, v%d, v%d row_ror:%d %s' % (16 + k, 16 + k, 16 + k, ro, DPPM))
        E('v_permlane32_swap_b32 v16, v17\nv_permlane32_swap_b32 v18, v19')
        E('v_max_f32 v16, 0, v16\nv_max_f32 v18, 0, v18\nv_mul_f32 v16, v16, v17\nv_mul_f32 v18, v18, v19')
        E('v_cvt_pk_bf16_f32 v20, v16, v18\nv_mov_b32 v21, v20\nv_permlane32_swap_b32 v20, v21')
        for q in range(2):
            for t in range(8):
                E('v_mfma_f32_4x4x4_16b_bf16 %s, %s, v[20:21], %s blgp:%d' % (vr(DA + 4 * t, 4), vr(WD + 4 * t + 2 * q, 2), '0' if q == 0 else vr(DA + 4 * t, 4), 4 + q))
        tag(range(DA, DA + 32), bTg)
        lstore(['buffer_store_dwordx4 %s, v%d, %s, s%d offen offset:%d' % (vr(DA + 4 * t, 4), bRDs, sr(sWS, 4), sR0 if t < 4 else sR16push, 1024 * (t & 3)) for t in range(8)])
        stamp('B_rd%d' % layer)
        E(join + ':')
        E('s_barrier')
        return False

    done = oproj(0) or ffn(0)
    if not done:
        settag(bTg, 0); settag(bT2, 4)
        E('s_barrier')
        if stop != 'XB0':
            xr(sXBo)
            stamp('B_xr2')
            gemv16(WQ, ACT, DA)
            tag(range(DA, DA + 8), bT2)
            lstore(push_stores(DA))
            publish_stats(1)
            E('s_barrier')
            if stop != 'QS1':
                E('s_barrier')
                if not (oproj(1) or ffn(1)):
                    settag(bTg, 1)
                    E('s_barrier')
                    E('s_and_b32 s%d, s%d, 7\ns_cmp_lg_u32 s%d, s%d\ns_cbranch_scc1 L_exit' % (sT0, sJ, sT0, sX))
                    E('s_cmp_lg_u32 s%d, 0\ns_cbranch_scc1 L_exit' % sW)
                    xr(sXBo)
                    E('s_mov_b64 exec, %s' % sr(sMN4, 2))
                    E('buffer_store_dwordx2 %s, v%d, %s, 0 offen' % (vr(ACT, 2), bOut, sr(sOUT, 4)))
                    E('s_mov_b64 exec, -1')
                    stamp('B_out')
                    E('s_cmp_lg_u32 s2, 0\ns_cbranch_scc1 L_exit')
                    E('s_add_u32 s%d, s%d, 16\nv_mov_b32 v16, s%d\nv_mov_b32 v17, 0\ns_mov_b64 exec, 1' % (sT0, sE, sT0))
                    E('buffer_store_dword v16, v17, %s, 0 offen\ns_mov_b64 exec, -1' % sr(sWS, 4))
    E('s_branch L_exit')

    for s in stubs:
        E(s)
    E('L_fail:')
    if stamps:
        E('s_mov_b64 exec, -1\nv_writelane_b32 v%d, -1, 63' % vStamp)
    E('L_exit:')
    if calib:
        E('s_add_u32 s3, s3, 6000\nL_cal:\ns_sleep 2\ns_memrealtime s[96:97]\ns_waitcnt lgkmcnt(0)\ns_sub_u32 s4, s96, s14\ns_cmp_lt_u32 s4, s3\ns_cbranch_scc1 L_cal')
    if stamps:
        E('s_mov_b64 exec, -1')
        E('s_lshl_b32 s%d, s2, 3\ns_add_u32 s%d, s%d, s%d\ns_lshl_b32 s%d, s%d, 8' % (sT0, sT0, sT0, sWave, sT0, sT0))
        E('s_add_u32 s4, s26, s%d\ns_addc_u32 s5, s27, 0\ns_add_u32 s4, s4, 0x%x\ns_addc_u32 s5, s5, 0' % (sT0, STAMP))
        E('v_lshlrev_b32 v16, 2, v1\nglobal_store_dword v16, v%d, s[4:5]' % vStamp)
        if dbgst:
            E('v_readlane_b32 s4, v%d, 0\nv_cmp_ne_u32 vcc, 0, v%d\nv_subrev_u32 v17, s4, v%d\nv_cndmask_b32 v17, 0, v17, vcc' % (vStamp, vStamp, vStamp))
            E('s_mov_b32 s8, s24\ns_mov_b32 s9, s25\ns_mov_b32 s10, 256\ns_mov_b32 s11, 0x20000\ns_mov_b64 exec, 0xfcfc')
            E('buffer_atomic_umax v17, v16, s[8:11], 0 offen')
    E('L_end:')
    E('s_endpgm')

    body = E.finish()
    ref = open('cdna_kernels/%s.s.ref' % KNAME).read().split('\n')
    hdr = [l for l in ref if l.startswith(';') and '@launch' not in l][:16]
    txt = '\n'.join(hdr) + '\n; @launch grid=(256,1,1) block=(512,1,1) lds=%d\n' % LDS_TOTAL
    txt += '.amdgcn_target "amdgcn-amd-amdhsa--gfx950"\n.text\n.globl %s_kernel\n.p2align 8\n.type %s_kernel,@function\n%s_kernel:\n' % (KNAME, KNAME, KNAME)
    txt += body
    txt += '''.section .rodata,"a"
.p2align 6
.amdhsa_kernel %s_kernel
  .amdhsa_next_free_vgpr 256
  .amdhsa_next_free_sgpr 102
  .amdhsa_accum_offset 256
  .amdhsa_group_segment_fixed_size 0
  .amdhsa_kernarg_size 96
  .amdhsa_user_sgpr_count 2
  .amdhsa_user_sgpr_kernarg_segment_ptr 1
  .amdhsa_system_sgpr_workgroup_id_x 1
.end_amdhsa_kernel
''' % KNAME
    return txt, stamp_names


if __name__ == '__main__':
    import argparse, json
    ap = argparse.ArgumentParser()
    ap.add_argument('-o', default='cdna_kernels/%s.s' % KNAME)
    ap.add_argument('--stop', default=None)
    ap.add_argument('--stamps', action='store_true')
    ap.add_argument('--opt', action='append', default=[])
    a = ap.parse_args()
    kw = {}
    for o in a.opt:
        k, v = o.split('=')
        try:
            v = int(v)
        except ValueError:
            pass
        kw[k] = v
    if 'dbgst' in kw:
        kw['dbgst'] = kw['dbgst'].split(',')
    txt, names = build(stop=a.stop, stamps=a.stamps, **kw)
    open(a.o, 'w').write(txt)
    if a.stamps:
        json.dump(names, open(a.o + '.json', 'w'))
    print('wrote', a.o, len(txt), 'bytes', txt.count('\n'), 'lines')
```

```python
import sys, struct, os
sys.path.insert(0, os.path.dirname(os.path.abspath(__file__)))
from emit import Emitter

KNAME = 'interleave_layers__sliding_block_cached__glu_gated_reglu__decode'

QS = 0x10000
ST = 0x20000
CM = 0x28000
LS = 0x30000
Q0A = 0x40000
GW = 0x38000
OS = 0x80000
OSC = 2560

RB = 0x140000
RU = 8448
RX = 32 * RU
XA = 0x400000
WS_USED = XA + 0x400000
STAMP = 0x10000000

S0 = 131072
S1 = S0 + 16384
LDS_WD = S1
LDS_PX = S1 + 8192
LDS_Q = S1 + 13312
LDS_ML = S1 + 14336
LDS_HS = S1 + 12288 + 64
LDS_QF = LDS_HS + 128
LDS_AI = LDS_QF + 4
LDS_GC = LDS_QF + 8
LDS_CNT = LDS_QF + 12
LDS_SIG = LDS_HS + 256
LDS_RS = LDS_SIG + 16
LDS_RM = LDS_HS + 384
LDS_TOTAL = 163840


def f32(x):
    return struct.unpack('<I', struct.pack('<f', x))[0]


LOG2E = 1.4426950408889634
SCALE = (128 ** -0.5) * LOG2E


def vr(a, n=1):
    return 'v%d' % a if n == 1 else 'v[%d:%d]' % (a, a + n - 1)


def sr(a, n=1):
    return 's%d' % a if n == 1 else 's[%d:%d]' % (a, a + n - 1)


DPPM = 'row_mask:0xf bank_mask:0xf'


def build(stop=None, stamps=False, light=None, xack=0, fullx=0, prd='', pdel=36, pridx=0, prew=0, xarr=10123, dual=0, xsel=0, xst='sc1', win=6, xfirst=1, x0pol='nt', vwin=4, aitile=7, lateB=0, nocm=0, touchR=1, diag='', cnts=0, touch=1, tpol='nt', probe=0, dl='', dbgst=None, calib=None, nob=0, tlb=0, nox=0, noclr=0, nopf=0, vend=0, xa=7, xc=7, apol='nt', lpol='nt', xpol='sc1', epf=1, kvrot=0, ncode=1, gwdelay=0, nokread=0, late=True, rot=37, xdelay=0, force_slow=False, kvpol='nt', wpol='nt', afirst=12, agap=4, bfirst=12, bgap=14, bD=3, cfirst=90):
    E = Emitter()
    cidx = [0]; cnames = []; diag_done = []
    diag = diag.split(':') if diag else None
    DL = {'ro0': (0, 0), 'ro1': (0, 0), 'rd': (0, 0), 'rq': (0, 0), 'q': (0, 0), 'os0': (0, 0), 'os1': (0, 0), 'x': (32, 0), 'rg': (0, 0), 'st': (8, 1), 'cs': (12, 1), 'cm': (16, 3)}
    for kv in (dl.split(',') if dl else []):
        k, a_, b_ = kv.split(':')
        DL[k] = (int(a_), int(b_))
    stubs = []

    sWS = 28; sA = 32; sBv = 36; sC = 40; sD = 44; sXs = 48; sOUT = 52; sDBG = 56
    sX, sJ, sB, sW, sE, sMode = 60, 61, 62, 63, 64, 65
    sT0, sT1, sT2, sT3, sCnt, sSig = 66, 67, 68, 69, 70, 71
    sR0, sR16push, sR16pull, sOSb, sLSb, sQ0, sQ1, sXAo, sXBo = 72, 73, 74, 75, 76, 77, 78, 79, 80
    sSTb, sMsk, sWave = 81, 82, 83
    sM1, sM2, sM3, sMN4 = 84, 86, 88, 90
    sMa, sMb = 92, 94
    sTm = 96
    sXA4, sXB4 = 98, 99
    sXn = [sXAo, sXBo, sXA4, sXB4]
    xarr = [int(c) for c in str(xarr)[1:]]
    vL = 1
    vStamp = 15

    lightA = [4, 6, 8, 10, 12, 16, 18, 20, 22, 24, 40, 42, 50, 52, 54, 56, 58, 84, 86, 88]
    lightB = [4, 6, 8, 10, 16, 18, 20, 22, 24, 36, 38, 40, 42, 48, 50, 56, 58]
    lightuse = {'A': [], 'B': []}
    stamp_names = {}

    def stamp(name):
        if calib and name == 'start':
            E('s_memrealtime s[14:15]\ns_mov_b32 s3, 0')
        if calib and name == calib:
            E('s_memrealtime s[96:97]\ns_waitcnt lgkmcnt(0)\ns_sub_u32 s3, s96, s14')
        if not stamps:
            return
        if light:
            pool = lightA if name[0] == 'A' else lightB
            if name == 'start':
                E('s_memrealtime s[14:15]')
                stamp_names[name] = 0
            elif name in light and pool:
                if name in stamp_names:
                    p = dict(lightuse[name[0]])[stamp_names[name]]
                else:
                    p = pool.pop(0)
                    idx = stamp_names.setdefault(name, len(stamp_names))
                    lightuse[name[0]].append((idx, p))
                E('s_memrealtime s[%d:%d]' % (p, p + 1))
            return
        if dbgst:
            if name not in dbgst and name != 'start':
                return
            idx = 0 if name == 'start' else [2, 3, 4, 5, 6, 7, 10, 11, 12, 13, 14, 15][dbgst.index(name)]
            stamp_names[name] = idx
        else:
            idx = stamp_names.setdefault(name, len(stamp_names))
        E('s_memrealtime s[96:97]\ns_waitcnt lgkmcnt(0)\nv_writelane_b32 v%d, s96, %d' % (vStamp, idx))

    def set_mask(s, val):
        E('s_mov_b32 %s, 0x%x\ns_mov_b32 %s, 0x%x' % (sr(s), val & 0xffffffff, sr(s + 1), val >> 32))

    def srd(d, lo, size):
        E('s_mov_b32 s%d, s%d\ns_mov_b32 s%d, s%d\ns_mov_b32 s%d, %d\ns_mov_b32 s%d, 0x20000' % (d, lo, d + 1, lo + 1, d + 2, size, d + 3))

    def settag(v, u):
        E('s_add_u32 s%d, s%d, %d\ns_and_b32 s%d, s%d, 0x7f\nv_mov_b32 v%d, s%d' % (sT0, sE, 1 + u, sT0, sT0, v, sT0))

    def tag(regs, vT):
        for r in regs:
            E('v_and_or_b32 v%d, v%d, s%d, v%d' % (r, r, sMsk, vT))

    def check(regs, vT, acc):
        E('v_xor_b32 v%d, v%d, v%d' % (acc, regs[0], vT))
        for r in regs[1:]:
            E('v_bitop3_b32 v%d, v%d, v%d, v%d bitop3:0xf6' % (acc, acc, r, vT))
        E('v_and_b32 v%d, 0xff, v%d\nv_cmp_ne_u32 vcc, 0, v%d' % (acc, acc, acc))

    def check_sent(regs, acc):
        E('v_max3_u32 v%d, v%d, v%d, v%d' % (acc, regs[0], regs[1], regs[2]))
        rest = regs[3:]
        while len(rest) >= 2:
            E('v_max3_u32 v%d, v%d, v%d, v%d' % (acc, acc, rest[0], rest[1]))
            rest = rest[2:]
        if rest:
            E('v_max_u32 v%d, v%d, v%d' % (acc, acc, rest[0]))
        E('v_cmp_eq_u32 vcc, -1, v%d' % acc)

    def delay(n):
        if n >= 4:
            E('s_sleep %d' % (n // 4))
        if n % 4:
            E('s_nop %d' % (4 * (n % 4) - 1))

    def poll(loads, chk, key=None):
        top = E.label('Lp')
        E('s_mov_b32 s%d, 0' % sCnt)
        first, again = DL.get(key, (0, 0))
        delay(first)
        if diag and key == diag[0] and not diag_done:
            diag_done.append(1)
            r = diag[1]
            stamp(r + '_d0')
            E('s_waitcnt vmcnt(0)')
            stamp(r + '_d1')
            loads()
            E('s_waitcnt vmcnt(0)')
            stamp(r + '_d2')
            loads()
            E('s_waitcnt vmcnt(0)')
            stamp(r + '_d3')
            loads()
            E('s_waitcnt vmcnt(0)')
            stamp(r + '_d4')
        if again:
            go = E.label('Lg')
            E('s_branch %s\n%s:\ns_sleep %d\n%s:' % (go, top, again, go))
        else:
            E(top + ':')
        loads()
        E('s_add_u32 s%d, s%d, 1\ns_cmp_gt_u32 s%d, 0x2000\ns_cbranch_scc1 L_fail' % (sCnt, sCnt, sCnt))
        E('s_waitcnt vmcnt(0)')
        chk()
        E('s_cbranch_vccnz %s' % top)
        if stamps and cnts:
            cidx[0] += 1
            cnames.append(key)
            E('v_writelane_b32 v%d, s%d, %d' % (vStamp, sCnt, 35 + cidx[0]))

    def poll_pipe(nload, nreg, base, loads, chk, dst, stride, D, first, gap):
        top = E.label('Lq'); done = E.label('Ld')
        oks = [E.label('Lo') for _ in range(D)]
        E('s_mov_b32 s%d, 0' % sCnt)
        if first:
            E('s_sleep %d' % first)
        for d in range(D - 1):
            loads(base + d * stride)
            E('s_sleep %d' % gap)
        E(top + ':')
        for d in range(D):
            loads(base + ((d + D - 1) % D) * stride)
            E('s_waitcnt vmcnt(%d)' % ((D - 1) * nload))
            chk(base + d * stride)
            E('s_cbranch_vccz %s' % oks[d])
        E('s_add_u32 s%d, s%d, 1\ns_cmp_lt_u32 s%d, 0x1000\ns_cbranch_scc1 %s\ns_branch L_fail' % (sCnt, sCnt, sCnt, top))
        for d in range(D):
            E(oks[d] + ':')
            for k in range(nreg):
                E('v_mov_b32 v%d, v%d' % (dst + k, base + d * stride + k))
            if d != D - 1:
                E('s_branch %s' % done)
        E(done + ':')

    def lstore(stores, always_sc1=False):
        if always_sc1:
            for s in stores:
                E(s + ' sc1')
            return
        slow = E.label('Ls'); back = E.label('Lb')
        E('s_cmp_eq_u32 s%d, 0\ns_cbranch_scc1 %s' % (sMode, slow))
        for s in stores:
            E(s)
        E(back + ':')
        stubs.append(slow + ':\n' + '\n'.join(s + (' sc1' if s.startswith('buffer') else '') for s in stores) + '\ns_nop 1\ns_branch ' + back)

    def lds_wait(addr, n, va, vd, nap=0):
        top = E.label('Lh')
        E('v_mov_b32 v%d, %d\ns_mov_b32 s%d, 0\n%s:' % (va, addr, sCnt, top))
        if nap:
            E('s_sleep %d' % nap)
        E('ds_read_b32 v%d, v%d\ns_add_u32 s%d, s%d, 1\ns_cmp_gt_u32 s%d, 0x4000\ns_cbranch_scc1 L_fail' % (vd, va, sCnt, sCnt, sCnt))
        E('s_waitcnt lgkmcnt(0)\nv_cmp_gt_u32 vcc, %d, v%d\ns_cbranch_vccnz %s' % (n, vd, top))

    def allred_dpp(op, r):
        E('%s_dpp v%d, v%d, v%d row_ror:4 %s' % (op, r, r, r, DPPM))
        E('%s_dpp v%d, v%d, v%d row_ror:8 %s' % (op, r, r, r, DPPM))

    def allred_rows(op, r, t):
        E('v_mov_b32 v%d, v%d\nv_permlane16_swap_b32 v%d, v%d\n%s v%d, v%d, v%d' % (t, r, r, t, op, r, r, t))
        E('v_mov_b32 v%d, v%d\nv_permlane32_swap_b32 v%d, v%d\n%s v%d, v%d, v%d' % (t, r, r, t, op, r, r, t))

    def quad_reduce(a, b):
        for k in range(4):
            E('v_add_f32 v%d, v%d, v%d' % (a + k, a + k, b + k))
        E('v_permlane32_swap_b32 v%d, v%d\nv_permlane32_swap_b32 v%d, v%d' % (a, a + 2, a + 1, a + 3))
        E('v_add_f32 v%d, v%d, v%d\nv_add_f32 v%d, v%d, v%d' % (a, a, a + 2, a + 1, a + 1, a + 3))
        E('v_permlane16_swap_b32 v%d, v%d\nv_add_f32 v%d, v%d, v%d' % (a, a + 1, a, a, a + 1))
        allred_dpp('v_add_f32', a)

    def common_consts():
        srd(sWS, 26, WS_USED)
        E('s_mul_i32 s%d, s%d, %d\ns_add_u32 s%d, s%d, %d' % (sR0, sX, RX, sR0, sR0, RB))
        E('s_add_u32 s%d, s%d, 4096\ns_add_u32 s%d, s%d, %d' % (sR16push, sR0, sR16pull, sR0, 16 * RU))
        E('s_mul_i32 s%d, s%d, %d\ns_add_u32 s%d, s%d, %d' % (sOSb, sX, 32 * OSC, sOSb, sOSb, OS))
        E('s_lshl_b32 s%d, s%d, 9\ns_add_u32 s%d, s%d, %d' % (sLSb, sX, sLSb, sLSb, LS))
        E('s_lshl_b32 s%d, s%d, 12\ns_add_u32 s%d, s%d, %d\ns_add_u32 s%d, s%d, 32768' % (sQ0, sX, sQ0, sQ0, QS, sQ1, sQ0))
        E('s_lshl_b32 s%d, s%d, 10\ns_add_u32 s%d, s%d, %d' % (sSTb, sX, sSTb, sSTb, ST))
        for n in range(4):
            E('s_mov_b32 s%d, %d' % (sXn[n], XA + 0x100000 * xarr[n]))
        E('s_mov_b32 s%d, 0xffffff00' % sMsk)
        set_mask(sMN4, 0x000F000F000F000F)
        set_mask(sMa, 0x0000000F0000000F)

    def finish_wave():
        E('s_branch L_exit')

    def maybe_stop(name):
        if stop == name:
            finish_wave()
            return True
        return False

    E('s_cmp_ge_u32 s2, 256\ns_cbranch_scc1 L_end')
    E('s_load_dwordx8 s[4:11], s[0:1], 0\ns_load_dwordx2 s[12:13], s[0:1], 32')
    E('s_load_dwordx8 s[16:23], s[0:1], 48\ns_load_dwordx4 s[24:27], s[0:1], 80')
    E('v_lshrrev_b32 v2, 6, v0\nv_and_b32 v1, 63, v0\nv_readfirstlane_b32 s%d, v2' % sWave)
    if epf:
        E('s_getpc_b64 s[100:101]\nL_pc0:\ns_lshl_b32 s%d, s%d, 10\ns_cmp_lt_u32 s%d, 4\ns_cselect_b32 s%d, 64, L_B-L_pc0-4096' % (sT0, sWave, sWave, sT1))
        E('s_add_u32 s%d, s%d, s%d\nv_lshl_add_u32 v2, v1, 4, s%d\nglobal_load_dwordx4 v[124:127], v2, s[100:101]' % (sT0, sT0, sT1, sT0))
    E('s_and_b32 s%d, s2, 7\ns_lshr_b32 s%d, s2, 3\ns_lshr_b32 s%d, s2, 6' % (sX, sJ, sB))
    E('s_and_b32 s%d, s%d, 3' % (sW, sWave))
    if stamps:
        E('v_mov_b32 v%d, 0' % vStamp)
    stamp('start')
    E('v_lshrrev_b32 v12, 4, v1\nv_and_b32 v13, 15, v1')
    E('s_cmp_lt_u32 s%d, 4\ns_cbranch_scc1 L_A' % sWave)
    bL16 = 122
    E('s_setprio 3')
    E('v_lshlrev_b32 v3, 4, v13\nv_lshl_add_u32 v2, v12, 13, v3\nv_lshlrev_b32 v%d, 4, v1' % bL16)
    E('v_lshrrev_b32 v5, 3, v1\nv_and_b32 v6, 7, v1\nv_mul_u32_u24 v5, 3584, v5\nv_lshl_add_u32 v5, v6, 4, v5')
    E('v_and_b32 v14, 3, v1\nv_lshlrev_b32 v8, 3, v12\nv_lshl_add_u32 v8, v14, 10, v8\nv_lshl_add_u32 v8, s%d, 5, v8' % sJ)
    E('s_lshl_b32 s%d, s%d, 12\ns_lshl_b32 s%d, s%d, 10' % (sT3, sW, sT2, sW))
    E('s_lshl_b32 s%d, s%d, 7\ns_add_u32 s%d, s%d, s%d\ns_lshl_b32 s%d, s%d, 2\ns_add_u32 s%d, s%d, s%d\ns_lshl_b32 s%d, s%d, 8' % (sT0, sJ, sT0, sT0, sX, sT0, sT0, sT0, sT0, sW, sT0, sT0))
    E('v_lshlrev_b32 v4, 2, v13\nv_lshl_add_u32 v4, v12, 7, v4\nv_add_u32 v4, %d, v4\nv_mov_b32 v7, 0\nds_write_b32 v4, v7' % LDS_HS)
    E('s_add_u32 m0, s%d, %d' % (sT3, S0))
    E('s_mov_b32 s%d, 4096\ns_mov_b32 s%d, 0x20000\ns_mov_b32 s%d, 4194304\ns_mov_b32 s%d, 0x20000' % (sXs + 2, sXs + 3, sA + 2, sA + 3))
    E('s_waitcnt lgkmcnt(0)')
    E('s_mov_b64 %s, s[10:11]\ns_mov_b64 %s, s[4:5]' % (sr(sA, 2), sr(sXs, 2)))
    E('buffer_load_dwordx4 v[16:19], v%d, %s, s%d offen %s' % (bL16, sr(sXs, 4), sT2, x0pol))
    E('buffer_load_dwordx2 v[32:33], v8, %s, 0 offen %s' % (sr(sXs, 4), x0pol))
    for i in range(4):
        if i:
            E('s_add_u32 m0, m0, 1024\ns_add_u32 s%d, s%d, 32768' % (sT0, sT0))
        E('buffer_load_dwordx4 v2, %s, s%d offen %s lds' % (sr(sA, 4), sT0, wpol))
    E('s_load_dword s%d, s[26:27], 0' % sE)
    E('s_barrier')
    E('s_branch L_B')

    E('L_A:')
    KR = 128
    vKo = [2, 3, 4, 5]; vVo = [6, 7]; vKr = [8, 9, 10, 11]
    E('v_xor_b32 v14, v13, v12\nv_lshlrev_b32 v14, 4, v14\nv_lshl_add_u32 v2, v12, 8, v14')
    for k in range(1, 4):
        E('v_xor_b32 v%d, %d, v2' % (vKo[k], 64 * k))
    E('v_lshlrev_b32 v14, 1, v12\nv_xor_b32 v14, v13, v14\nv_lshlrev_b32 v14, 4, v14\nv_lshl_add_u32 v6, v12, 8, v14')
    E('v_xor_b32 v7, 128, v6')
    if kvrot:
        E('s_add_u32 s%d, s%d, %d\ns_and_b32 s%d, s%d, 7' % (sT1, sX, kvrot, sT1, sT1))
        E('s_lshl_b32 s%d, s%d, 3\ns_add_u32 s%d, s%d, s%d\ns_lshl_b32 s%d, s%d, 22' % (sT0, sB, sT0, sT0, sT1, sT0, sT0))
    else:
        E('s_lshl_b32 s%d, s%d, 3\ns_add_u32 s%d, s%d, s%d\ns_lshl_b32 s%d, s%d, 22' % (sT0, sB, sT0, sT0, sX, sT0, sT0))
    E('s_and_b32 s%d, s%d, 7\ns_lshl_b32 s%d, s%d, 17\ns_add_u32 s%d, s%d, s%d\ns_add_u32 s%d, s%d, %d' % (sT1, sJ, sT1, sT1, sT0, sT0, sT1, sT0, sT0, 12288 * 256))
    sOff, sOf0, sLb = 44, 45, 46
    E('s_mul_i32 s%d, s2, %d\ns_add_u32 s%d, s%d, s%d\ns_and_b32 s%d, s%d, 127\ns_lshl_b32 s%d, s%d, 10' % (sOf0, rot, sOf0, sOf0, sW, sOf0, sOf0, sOf0, sOf0))
    E('s_lshl_b32 s%d, s%d, 15' % (sLb, sW))
    E('s_waitcnt lgkmcnt(0)')
    E('s_add_u32 s%d, s6, s%d\ns_addc_u32 s%d, s7, 0\ns_mov_b32 s%d, 131072\ns_mov_b32 s%d, 0x20000' % (sA, sT0, sA + 1, sA + 2, sA + 3))
    E('s_add_u32 s%d, s8, s%d\ns_addc_u32 s%d, s9, 0\ns_mov_b32 s%d, 131072\ns_mov_b32 s%d, 0x20000' % (sBv, sT0, sBv + 1, sBv + 2, sBv + 3))
    E('s_load_dword s%d, s[26:27], 0' % sE)
    if tlb:
        E('s_mov_b64 exec, 1\nbuffer_load_dword v16, v2, %s, 0 offen nt\ns_mov_b64 exec, -1' % sr(sBv, 4))

    def kvload(i, srdn, voff, windowed=True):
        E('s_add_u32 m0, s%d, %d' % (sLb, i * 1024))
        if i == 0:
            E('s_mov_b32 s%d, s%d' % (sOff, sOf0))
        else:
            E('s_add_u32 s%d, s%d, 4096\ns_and_b32 s%d, s%d, 0x1ffff' % (sOff, sOff, sOff, sOff))
        if win and windowed and (i >= win or srdn == sBv):
            E('s_waitcnt vmcnt(%d)' % (win - 1))
        E('buffer_load_dwordx4 v%d, %s, s%d offen %s lds' % (voff, sr(srdn, 4), sOff, kvpol))

    vVT = [112, 113, 114, 115]
    vPXw, vPXr, vMLa, vQf, vOSw, vLSw = 116, 117, 118, 119, 82, 83
    vRgPush, vRgPull, vXp, vQSw, vSTr, vXpF = 120, 121, 122, 123, 87, 2
    vTg, vAcc = 3, 4
    def reducer_addrs(vPush, vPull, vX, vXF, vQ, vS, t0):
        E('v_and_b32 v%d, 3, v1\nv_lshrrev_b32 v%d, 2, v1' % (t0, t0 + 1))
        E('s_lshl_b32 s%d, s%d, 6\nv_lshl_add_u32 v%d, v%d, 4, s%d' % (sT0, sW, t0 + 2, t0, sT0))
        E('s_mul_i32 s%d, s%d, %d\nv_lshl_add_u32 v%d, v%d, 8, v%d\nv_add_u32 v%d, s%d, v%d' % (sT1, sJ, RU, vPush, t0 + 1, t0 + 2, vPush, sT1, vPush))
        if vPull is not None:
            E('v_mul_u32_u24 v%d, %d, v%d\nv_add_u32 v%d, v%d, v%d\ns_lshl_b32 s%d, s%d, 8\nv_add_u32 v%d, s%d, v%d' % (vPull, RU, t0 + 1, vPull, vPull, t0 + 2, sT1, sJ, vPull, sT1, vPull))
        if vX is not None:
            if fullx:
                E('s_lshl_b32 s%d, s%d, 15\ns_lshl_b32 s%d, s%d, 9\ns_add_u32 s%d, s%d, s%d\ns_lshl_b32 s%d, s%d, 7\ns_add_u32 s%d, s%d, s%d' % (sT0, sJ, sT1, sX, sT0, sT0, sT1, sT1, sW, sT0, sT0, sT1))
                E('v_and_b32 v%d, 7, v1\nv_lshlrev_b32 v%d, 4, v%d\nv_add_u32 v%d, s%d, v%d' % (t0 + 3, t0 + 3, t0 + 3, t0 + 3, sT0, t0 + 3))
                E('v_lshrrev_b32 v%d, 3, v1\nv_lshl_add_u32 v%d, v%d, 12, v%d' % (vX, vX, vX, t0 + 3))
                E('s_and_b32 s%d, s%d, 7\ns_lshl_b32 s%d, s%d, 12\nv_add_u32 v%d, s%d, v%d' % (sT0, sJ, sT0, sT0, vXF, sT0, t0 + 3))
            else:
                E('s_lshl_b32 s%d, s%d, 15\ns_lshl_b32 s%d, s%d, 8\ns_add_u32 s%d, s%d, s%d\nv_add_u32 v%d, s%d, v%d' % (sT0, sJ, sT1, sX, sT0, sT0, sT1, t0 + 3, sT0, t0 + 2))
                E('v_lshrrev_b32 v%d, 5, v1\nv_lshl_add_u32 v%d, v%d, 13, v%d' % (vX, t0 + 3, vX, t0 + 3))
                E('v_and_b32 v%d, 3, v%d\nv_lshl_add_u32 v%d, v%d, 11, v%d\nv_bfe_u32 v%d, v1, 4, 1\nv_lshl_add_u32 v%d, v%d, 14, v%d' % (vX, t0 + 1, vX, vX, t0 + 3, vXF, vX, vXF, vX))
                E('s_and_b32 s%d, s%d, 3\ns_lshl_b32 s%d, s%d, 11\ns_and_b32 s%d, s%d, 4\ns_lshl_b32 s%d, s%d, 12\ns_add_u32 s%d, s%d, s%d\nv_add_u32 v%d, s%d, v%d' % (sT0, sJ, sT0, sT0, sT1, sJ, sT1, sT1, sT0, sT0, sT1, vXF, sT0, t0 + 3))
        E('v_lshrrev_b32 v%d, 5, v1\nv_lshlrev_b32 v%d, 2, v%d\nv_lshl_add_u32 v%d, v%d, 10, v%d' % (t0 + 3, t0 + 3, t0 + 3, t0 + 3, t0, t0 + 3))
        E('s_and_b32 s%d, s%d, 7\ns_lshl_b32 s%d, s%d, 7\ns_lshl_b32 s%d, s%d, 4\ns_add_u32 s%d, s%d, s%d' % (sT0, sJ, sT0, sT0, sT1, sB, sT0, sT0, sT1))
        E('s_lshr_b32 s%d, s%d, 1\ns_lshl_b32 s%d, s%d, 6\ns_add_u32 s%d, s%d, s%d\ns_and_b32 s%d, s%d, 1\ns_lshl_b32 s%d, s%d, 3\ns_add_u32 s%d, s%d, s%d' % (sT1, sW, sT1, sT1, sT0, sT0, sT1, sT1, sW, sT1, sT1, sT0, sT0, sT1))
        E('v_add_u32 v%d, s%d, v%d' % (vQ, sT0, t0 + 3))
        if vS is not None:
            E('v_lshlrev_b32 v%d, 3, v%d\nv_add_u32 v%d, %d, v%d' % (vS, t0, vS, LDS_RS, vS))

    def a_setup():
        common_consts()
        E('v_lshrrev_b32 v16, 2, v1')
        E('v_and_b32 v17, 7, v16\nv_lshlrev_b32 v17, 1, v17')
        E('v_bfe_u32 v18, v1, 1, 1\ns_lshl_b32 s%d, s%d, 2\nv_add_u32 v18, s%d, v18' % (sT0, sW, sT0))
        E('v_xor_b32 v18, v18, v17\nv_lshlrev_b32 v18, 4, v18\nv_lshl_add_u32 v18, v16, 8, v18')
        E('v_and_b32 v19, 1, v1\nv_lshl_add_u32 v112, v19, 3, v18')
        E('v_xor_b32 v113, 32, v112\nv_add_u32 v114, 0x10000, v112\nv_add_u32 v115, 0x10000, v113')
        E('s_lshl_b32 s%d, s%d, 10\ns_add_u32 s%d, s%d, %d\nv_lshl_add_u32 v%d, v1, 4, s%d' % (sT0, sW, sT0, sT0, LDS_PX, vPXw, sT0))
        E('v_and_b32 v16, 3, v1\nv_lshl_add_u32 v17, v12, 4, v16\nv_lshlrev_b32 v17, 4, v17\nv_add_u32 v%d, %d, v17' % (vPXr, LDS_PX))
        E('v_lshlrev_b32 v17, 3, v1\nv_add_u32 v%d, %d, v17' % (vMLa, LDS_ML))
        E('v_lshlrev_b32 v17, 4, v16\nv_lshl_add_u32 v%d, v12, 6, v17' % vQf)
        E('v_mul_u32_u24 v17, %d, v16' % (8 * OSC))
        E('s_mul_i32 s%d, s%d, %d\ns_and_b32 s%d, s%d, 7\ns_mul_i32 s%d, s%d, 320\ns_add_u32 s%d, s%d, s%d\ns_lshl_b32 s%d, s%d, 4\ns_add_u32 s%d, s%d, s%d' % (sT0, sW, 2 * OSC, sT1, sJ, sT1, sT1, sT0, sT0, sT1, sT1, sB, sT0, sT0, sT1))
        E('v_add_u32 v17, s%d, v17\nv_lshl_add_u32 v%d, v12, 6, v17' % (sT0, vOSw))
        E('v_mul_u32_u24 v18, %d, v12\nv_add_u32 v%d, v17, v18' % (OSC, vLSw))

        reducer_addrs(vRgPush, vRgPull, vXp, 14, vQSw, vSTr, 16)

    for i in range(32):
        kvload(i, sA, vKo[i & 3])
        if i == pridx and prew in (6, 7):
            skip = E.label('Lk')
            E('s_cmp_ge_u32 s%d, %d\ns_cbranch_scc1 %s' % (sW, 3 if prew == 6 else 2, skip))
            srd(sWS, 26, WS_USED)
            E('s_lshl_b32 s%d, s%d, 15\ns_lshl_b32 s%d, s%d, 8\ns_add_u32 s%d, s%d, s%d\ns_lshl_b32 s%d, s%d, 20\ns_add_u32 s%d, s%d, s%d\ns_add_u32 s%d, s%d, %d' % (sT0, sJ, sT1, sX, sT0, sT0, sT1, sT1, sW, sT0, sT0, sT1, sT0, sT0, XA))
            E('v_lshlrev_b32 v16, 4, v13\nv_lshl_add_u32 v16, v12, 11, v16\ns_add_u32 s%d, s%d, 16384' % (sT1, sT0))
            E('buffer_load_dwordx4 v[20:23], v16, %s, s%d offen\nbuffer_load_dwordx4 v[20:23], v16, %s, s%d offen' % (sr(sWS, 4), sT0, sr(sWS, 4), sT1))
            E(skip + ':')
        if i == 3:
            E('s_barrier')
        if i == max(win, 4) - 1 + (8 if not win else 0):
            E('v_xor_b32 v14, v12, v13\nv_lshlrev_b32 v14, 4, v14\nv_lshl_add_u32 v8, v13, 8, v14\nv_add_u32 v8, s%d, v8' % sLb)
            for c in range(1, 4):
                E('v_xor_b32 v%d, %d, v8' % (vKr[c], 64 * c))
            a_setup()
    QF = 16; SA = 32; PA = 32; PB = 36; PP = 72; TM = 64; CF = 88; vLSE = 124; vM = 80; vLp = 81
    TORD = [0, 2, 4, 6, 1, 3, 5, 7]

    def vfrag_reads(dst, wp, t, e):
        a = vVT[e + 2 * (wp >> 1)]
        off = (wp & 1) * 32768 + t * 8192
        return ['ds_read_b64_tr_b16 %s, v%d offset:%d' % (vr(dst, 2), a, off),
                'ds_read_b64_tr_b16 %s, v%d offset:%d' % (vr(dst + 2, 2), a, off + 4096)]

    FR = [(wp, t, e) for wp in range(4) for t in range(4) for e in range(2)]
    fragreg = {f: KR + 16 * TORD[n // 4] + 4 * (n % 4) for n, f in enumerate(FR)}

    def scores_softmax(phase):
        pend = []
        for k, t in enumerate(TORD):
            for c in range(4):
                E('v_mfma_f32_16x16x32_bf16 %s, %s, %s, %s' % (vr(SA + 4 * t, 4), vr(KR + 16 * t + 4 * c, 4), vr(QF + 4 * c, 4), '0' if c == 0 else vr(SA + 4 * t, 4)))
                for _ in range(2):
                    if pend:
                        E(pend.pop(0))
            if phase == 2:
                for n in range(4 * k, 4 * k + 4):
                    pend += vfrag_reads(fragreg[FR[n]], *FR[n])
            if k == 4:
                pk = []
                for tt in range(1, 4):
                    for r in range(4):
                        pk.append('v_mov_b32_dpp v%d, v%d row_shr:%d row_mask:0xf bank_mask:0x%x' % (PA + r, SA + 8 * tt + r, 4 * tt, 1 << tt))
                pk.append('v_max3_f32 v%d, v%d, v%d, v%d' % (vM, PA, PA + 1, PA + 2))
                pk.append('v_max_f32 v%d, v%d, v%d' % (vM, vM, PA + 3))
                if phase == 2:
                    mix = []
                    while pk or pend:
                        if pend: mix.append(pend.pop(0))
                        if pk: mix.append(pk.pop(0))
                    pend = mix
                else:
                    pend = pk
        for tt in range(1, 3):
            for r in range(4):
                E('v_mov_b32_dpp v%d, v%d row_shr:%d row_mask:0xf bank_mask:0x%x' % (PB + r, SA + 4 + 8 * tt + r, 4 * tt, 1 << tt))
        while pend:
            E(pend.pop(0))
        for r in range(4):
            E('v_mov_b32_dpp v%d, v%d row_shr:12 row_mask:0xf bank_mask:0x8' % (PB + r, SA + 28 + r))
        E('v_max3_f32 v%d, v%d, v%d, v%d\nv_max3_f32 v%d, v%d, v%d, v%d' % (vM, vM, PB, PB + 1, vM, vM, PB + 2, PB + 3))
        allred_dpp('v_max_f32', vM)
        allred_rows('v_max_f32', vM, TM)
        if phase == 2:
            top = E.label('Lh')
            E('s_mov_b32 s%d, 0\nv_mov_b32 v%d, %d\n%s:\nds_read_b32 v%d, v%d\ns_add_u32 s%d, s%d, 1\ns_cmp_gt_u32 s%d, 0x8000\ns_cbranch_scc1 L_fail' % (sCnt, TM + 1, LDS_SIG, top, TM + 2, TM + 1, sCnt, sCnt, sCnt))
            E('s_waitcnt lgkmcnt(0)\nv_readfirstlane_b32 s%d, v%d\ns_cmp_eq_u32 s%d, -1\ns_cbranch_scc1 %s' % (sSig, TM + 2, sSig, top))
        E('v_mul_f32_e64 v%d, s%d, -v%d' % (TM, sSig, vM))
        for r in range(8):
            E('v_fma_f32 v%d, v%d, s%d, v%d' % (PA + r, PA + r, sSig, TM))
        for r in range(8):
            E('v_exp_f32 v%d, v%d' % (PA + r, PA + r))
        for r in range(4):
            E('v_cvt_pk_bf16_f32 v%d, v%d, v%d' % (PP + r, PA + 2 * r, PA + 2 * r + 1))
        E('ds_write_b128 v%d, %s' % (vPXw, vr(PP, 4)))
        E('v_add_f32 v%d, v%d, v%d\nv_add_f32 v%d, v%d, v%d' % (TM, PA, PA + 1, TM + 1, PA + 2, PA + 3))
        E('v_add_f32 v%d, v%d, v%d\nv_add_f32 v%d, v%d, v%d' % (TM + 2, PA + 4, PA + 5, TM + 3, PA + 6, PA + 7))
        E('v_add_f32 v%d, v%d, v%d\nv_add_f32 v%d, v%d, v%d\nv_add_f32 v%d, v%d, v%d' % (TM, TM, TM + 1, TM + 2, TM + 2, TM + 3, TM + 5, TM, TM + 2))
        E('v_mov_b32 v%d, v%d' % (TM + 4, vM))
        E('s_lshl_b32 s%d, s%d, 9\nv_add_u32 v%d, s%d, v%d' % (sT0, sW, TM + 6, sT0, vMLa))
        E('ds_write_b64 v%d, %s' % (TM + 6, vr(TM + 4, 2)))

    TC = 84
    MLR = 92

    def coef_reads():
        return ['ds_read_b64 %s, v%d offset:%d' % (vr(MLR + 2 * w, 2), vMLa, 512 * w) for w in range(4)]

    def coef_ops():
        o = []
        o.append('v_max3_f32 v%d, v%d, v%d, v%d' % (vM, MLR, MLR + 2, MLR + 4))
        o.append('v_max_f32 v%d, v%d, v%d' % (vM, vM, MLR + 6))
        for w in range(4):
            o.append('v_sub_f32 v%d, v%d, v%d' % (CF + w, MLR + 2 * w, vM))
        for w in range(4):
            o.append('v_mul_f32 v%d, s%d, v%d' % (CF + w, sSig, CF + w))
        for w in range(4):
            o.append('v_exp_f32 v%d, v%d' % (CF + w, CF + w))
        o.append('v_mul_f32 v%d, v%d, v%d' % (vLp, CF, MLR + 1))
        for w in range(1, 4):
            o.append('v_fmac_f32 v%d, v%d, v%d' % (vLp, CF + w, MLR + 2 * w + 1))
        o.append('v_add_f32_dpp v%d, v%d, v%d row_ror:4 %s' % (vLp, vLp, vLp, DPPM))
        o.append('v_add_f32_dpp v%d, v%d, v%d row_ror:8 %s' % (vLp, vLp, vLp, DPPM))
        for sw in ('16', '32'):
            o.append('v_mov_b32 v%d, v%d' % (TC, vLp))
            o.append('v_permlane%s_swap_b32 v%d, v%d' % (sw, vLp, TC))
            o.append('v_add_f32 v%d, v%d, v%d' % (vLp, vLp, TC))
        o.append('v_rcp_f32 v%d, v%d' % (TC + 1, vLp))
        o.append('v_log_f32 v%d, v%d' % (TC + 2, vLp))
        for w in range(4):
            o.append('v_mul_f32 v%d, v%d, v%d' % (CF + w, CF + w, TC + 1))
        o.append('v_fma_f32 v%d, v%d, s%d, v%d' % (vLSE, vM, sSig, TC + 2))
        o.append('v_and_or_b32 v%d, v%d, s%d, v%d' % (vLSE, vLSE, sMsk, vTg))
        for k in range(1, 4):
            o.append('v_mov_b32 v%d, v%d' % (vLSE + k, vLSE))
        return o


    def publish_O(OF):
        tag(range(OF, OF + 8), vTg)
        E('s_mov_b64 exec, %s' % sr(sMN4, 2))
        lstore(['buffer_store_dwordx4 %s, v%d, %s, s%d offen' % (vr(OF, 4), vOSw, sr(sWS, 4), sOSb),
                'buffer_store_dwordx4 %s, v%d, %s, s%d offen offset:%d' % (vr(OF + 4, 4), vOSw, sr(sWS, 4), sOSb, OSC),
                's_mov_b32 exec_hi, 0',
                'buffer_store_dwordx4 %s, v%d, %s, s%d offen offset:256' % (vr(vLSE, 4), vLSw, sr(sWS, 4), sOSb)])
        E('s_mov_b64 exec, -1')

    def acc(wp, e):
        return SA + 8 * wp + 4 * e

    def fin_ops(wp, OF=72):
        o = []
        cp = CF + (wp & ~1)
        sel = 'op_sel:[0,%d%s] op_sel_hi:[1,%d%s]' % (wp & 1, ',0' if wp else '', wp & 1, ',1' if wp else '')
        for e in range(2):
            for r in range(0, 4, 2):
                if wp == 0:
                    o.append('v_pk_mul_f32 %s, %s, %s %s' % (vr(OF + 4 * e + r, 2), vr(acc(0, e) + r, 2), vr(cp, 2), sel))
                else:
                    o.append('v_pk_fma_f32 %s, %s, %s, %s %s' % (vr(OF + 4 * e + r, 2), vr(acc(wp, e) + r, 2), vr(cp, 2), vr(OF + 4 * e + r, 2), sel))
        return o

    sSt, sRet = 47, 48

    def sub_scores():
        stamp('A_b1')
        E('v_add_u32 v%d, %d, v%d' % (TM + 8, LDS_Q, vQf))
        E('v_mov_b32 v17, %d\nds_read_b64 %s, v17' % (LDS_SIG, vr(TM, 2)))
        for c in range(4):
            E('ds_read_b128 %s, v%d offset:%d' % (vr(QF + 4 * c, 4), TM + 8, 256 * c))
        E('s_waitcnt lgkmcnt(0)')
        E('v_readfirstlane_b32 s%d, v%d\nv_readfirstlane_b32 s%d, v%d' % (sSig, TM, sMode, TM + 1))
        scores_softmax(1)
        stamp('A_sm1')
        E('s_mov_b32 s%d, 1' % sSt)

    def announce():
        E('s_waitcnt lgkmcnt(0)\ns_mov_b64 exec, 1\nds_add_u32 v10, v8\ns_mov_b64 exec, -1\ns_mov_b32 s%d, 2' % sSt)

    def peek(addr_v, off, n, skip):
        E('ds_read_b32 v9, v%d offset:%d\ns_waitcnt lgkmcnt(0)\nv_cmp_gt_u32 vcc, %d, v9\ns_cbranch_vccnz %s' % (addr_v, off, n, skip))

    for t in range(8):
        if t < 4:
            E('s_waitcnt vmcnt(%d)' % (24 - 4 * t))
            for tt in (2 * t, 2 * t + 1):
                for c in range(4):
                    E('ds_read_b128 %s, v%d offset:%d' % (vr(KR + 16 * tt + 4 * c, 4), vKr[c], tt * 4096))
            E('s_waitcnt lgkmcnt(0)')
        if vwin:
            E('s_waitcnt vmcnt(%d)' % vwin)
        for i in range(4 * t, 4 * t + 4):
            kvload(i, sBv, vVo[i & 1], False)
        if t == 3:
            E('v_mov_b32 v%d, v14\nv_mov_b32 v10, %d\nv_mov_b32 v11, %d\nv_mov_b32 v8, 1\ns_mov_b32 s%d, 0' % (vXpF, LDS_CNT, LDS_QF, sSt))
            settag(vTg, 0)
        if t == aitile:
            E('s_mov_b64 exec, 1\nds_add_u32 v11, v8 offset:%d\ns_mov_b64 exec, -1' % (LDS_AI - LDS_QF))
        if 3 <= t < 7:
            n0, nx = E.label('Lc'), E.label('Lc')
            if t >= 6:
                n2 = E.label('Lc')
                E('s_cmp_lg_u32 s%d, 2\ns_cbranch_scc1 %s' % (sSt, n2))
                peek(10, 0, 4, nx)
                E('s_call_b64 %s, L_sub_pv\ns_branch %s\n%s:' % (sr(sRet, 2), nx, n2))
            E('s_cmp_lg_u32 s%d, 0\ns_cbranch_scc1 %s' % (sSt, n0))
            peek(11, 0, 1, nx)
            E('s_call_b64 %s, L_sub_s\n%s:' % (sr(sRet, 2), n0))
            if t >= 5:
                E('s_cmp_lg_u32 s%d, 1\ns_cbranch_scc1 %s\ns_waitcnt vmcnt(%d)' % (sSt, nx, 4 * (t + 1) - 16))
                announce()
            E(nx + ':')
    stamp('A_issued')
    n0, n1, n2 = E.label('Lc'), E.label('Lc'), E.label('Lc')
    E('s_cmp_lg_u32 s%d, 0\ns_cbranch_scc1 %s' % (sSt, n0))
    lds_wait(LDS_QF, 1, 11, 9, 1)
    E('s_call_b64 %s, L_sub_s\n%s:' % (sr(sRet, 2), n0))
    E('s_cmp_lg_u32 s%d, 1\ns_cbranch_scc1 %s\ns_waitcnt vmcnt(16)' % (sSt, n1))
    announce()
    E('%s:\ns_cmp_lg_u32 s%d, 2\ns_cbranch_scc1 %s' % (n1, sSt, n2))
    lds_wait(LDS_CNT, 4, 10, 9)
    E('s_call_b64 %s, L_sub_pv\n%s:' % (sr(sRet, 2), n2))

    def a_sync(n, vm):
        E('s_waitcnt vmcnt(%d) lgkmcnt(0)' % vm)
        stamp('A_w%d' % n)
        top = E.label('Lh')
        E('s_mov_b64 exec, 1\nds_add_u32 v10, v8\ns_mov_b64 exec, -1\ns_mov_b32 s%d, 0\n%s:\nds_read_b32 v9, v10' % (sCnt, top))
        E('s_add_u32 s%d, s%d, 1\ns_cmp_gt_u32 s%d, 0x8000\ns_cbranch_scc1 L_fail\ns_waitcnt lgkmcnt(0)' % (sCnt, sCnt, sCnt))
        E('v_cmp_gt_u32 vcc, %d, v9\ns_cbranch_vccnz %s' % (4 * (n + 1), top))
        stamp('A_s%d' % n)


    def unit_reads(sl, t, wp, withp=True):
        o = ['ds_read_b128 %s, v%d offset:%d' % (vr(sl, 4), vPXr, wp * 1024 + t * 64)] if withp else []
        for e in range(2):
            o += vfrag_reads(sl + 4 + 4 * e, wp, t, e)
        return o

    def unit_mfma(sl, t, wp, psl=None):
        return ['v_mfma_f32_16x16x32_bf16 %s, %s, %s, %s' % (vr(acc(wp, e), 4), vr(sl + 4 + 4 * e, 4), vr(sl if psl is None else psl, 4), '0' if t == 0 else vr(acc(wp, e), 4)) for e in range(2)]

    SLOT = [16, 64, 100]

    def stage(ts, first):
        units = [(t, wp) for t in ts for wp in range(4)]
        co = []
        if first:
            for st in coef_reads():
                E(st)
            co = coef_ops()
        for k in range(2):
            for st in unit_reads(SLOT[k], *units[k]):
                E(st)
        for k, (t, wp) in enumerate(units):
            if k + 2 < len(units):
                for st in unit_reads(SLOT[(k + 2) % 3], *units[k + 2]):
                    E(st)
                E('s_waitcnt lgkmcnt(10)')
            else:
                E('s_waitcnt lgkmcnt(%d)' % (5 if k + 1 < len(units) else 0))
            for st in unit_mfma(SLOT[k % 3], t, wp):
                E(st)
            for _ in range(5):
                if co:
                    E(co.pop(0))
        while co:
            E(co.pop(0))
    def subs():
        E('L_sub_s:')
        sub_scores()
        E('s_setpc_b64 %s\nL_sub_pv:' % sr(sRet, 2))
        stamp('A_s0')
        stage((0, 1), True)
        stamp('A_p0')
        E('s_mov_b32 s%d, 3\ns_setpc_b64 %s' % (sSt, sr(sRet, 2)))
    a_sync(1, 8)
    stage((2,), False)
    for wp in range(4):
        E('ds_read_b128 %s, v%d offset:%d' % (vr(16 + 4 * wp, 4), vPXr, wp * 1024 + 192))
    a_sync(2, 0)
    VB = [60, 68, 92, 100]
    for wp in range(4):
        for st in unit_reads(VB[wp], 3, wp, withp=False):
            E(st)
    for wp in range(4):
        E('s_waitcnt lgkmcnt(%d)' % (12 - 4 * wp))
        for st in unit_mfma(VB[wp], 3, wp, psl=16 + 4 * wp):
            E(st)
        if wp >= 2:
            for st in fin_ops(wp - 2):
                E(st)
    for st in fin_ops(2) + fin_ops(3):
        E(st)
    stamp('A_pv1')
    publish_O(72)
    E('s_barrier')
    if prew == 1:
        E('v_mov_b32 v16, -1\nv_mov_b32 v17, -1\nv_mov_b32 v18, -1\nv_mov_b32 v19, -1')
        if not dual:
            E('s_mov_b32 exec_hi, 0')
        for n in range(3):
            E('buffer_store_dwordx4 v[16:19], v%d, %s, s%d offen sc1' % (vXp, sr(sWS, 4), sXn[n]))
        E('s_mov_b64 exec, %s' % (sr(sMa, 2) if dual else '15'))
        E('buffer_store_dwordx4 v[16:19], v%d, %s, s%d offen sc1\ns_mov_b64 exec, -1' % (vXpF, sr(sWS, 4), sXn[3]))
    if maybe_stop('OS0'):
        pass
    else:
        RA, RBb = 16, 20

        def red_gather(vaddr, s0, s16, key, partial=False):
            def loads():
                E(('buffer_load_dwordx4 %s, v%d, %s, s%d offen @@' % (vr(RA, 4), vaddr, sr(sWS, 4), s0)).replace('@@', lpol))
                if partial:
                    E('s_mov_b64 exec, %s' % sr(sMb, 2))
                E(('buffer_load_dwordx4 %s, v%d, %s, s%d offen @@' % (vr(RBb, 4), vaddr, sr(sWS, 4), s16)).replace('@@', lpol))
                if partial:
                    E('s_mov_b64 exec, -1')
            poll(loads, lambda: check(list(range(RA, RA + 8)), vTg, vAcc), key)
            quad_reduce(RA, RBb)

        def xpush(n, vT2, final=False):
            E('v_and_or_b32 v16, v16, s%d, v%d' % (sMsk, vT2))
            E('v_mov_b32 v17, v16\nv_permlane16_swap_b32 v16, v17\nv_mov_b32 v18, v16\nv_mov_b32 v19, v17')
            E('v_permlane32_swap_b32 v16, v18\nv_permlane32_swap_b32 v17, v19')
            if final:
                E('s_mov_b64 exec, %s' % ('0xff' if fullx else sr(sMa, 2) if dual else '15'))
            elif not dual and not fullx:
                E('s_mov_b32 exec_hi, 0')
            E('buffer_store_dwordx4 v[16:19], v%d, %s, s%d offen %s' % (vXpF if final else vXp, sr(sWS, 4), sXn[n], xst.replace('_', ' ')))
            if final or (not dual and not fullx):
                E('s_mov_b64 exec, -1')

        vT2 = 5; vRs = 6
        set_mask(sMb, 0x0000FFFFFFFFFFFF)

        def ffn_half(layer):
            settag(vTg, 1 + 4 * layer); settag(vT2, layer)
            E('s_barrier')
            stamp('A_a%d' % layer)
            red_gather(vRgPull, sR0, sR16pull, 'ro%d' % layer)
            xpush(2 * layer, vT2)
            stamp('A_x%d' % (2 * layer + 1))
            E('s_barrier')
            if maybe_stop('XA%d' % layer):
                return True
            settag(vTg, 3 + 4 * layer)
            for k in range(4):
                E('v_mov_b32 v%d, v%d' % (RBb + k, vTg))
            E('s_barrier')
            stamp('A_c%d' % layer)
            E('ds_read_b64 %s, v%d' % (vr(vRs, 2), vSTr))
            red_gather(vRgPull, sR0, sR16pull, 'rd', partial=True)
            E('s_waitcnt lgkmcnt(0)')
            if layer == 0:
                E('v_mul_f32 v%d, v%d, v%d' % (RA, RA, vRs))
            else:
                E('v_fma_f32 v%d, v%d, v%d, v%d' % (RA, RA, vRs, vRs + 1))
            xpush(2 * layer + 1, vT2, final=(layer == 1))
            stamp('A_x%d' % (2 * layer + 2))
            E('s_barrier')
            if xack:
                E('s_waitcnt vmcnt(0)')
                stamp('A_k%d' % (2 * layer + 2))
            return False

        if not ffn_half(0) and not maybe_stop('XB0'):
            settag(vTg, 4)
            E('s_barrier')
            stamp('A_e')
            red_gather(vRgPush, sR0, sR16push, 'rq')
            E('v_mov_b32 v17, v16\nv_permlane16_swap_b32 v16, v17\nv_cvt_pk_bf16_f32 v16, v16, v17\nv_min_u32 v16, -2, v16')
            E('s_mov_b64 exec, %s' % sr(sMa, 2))
            lstore(['buffer_store_dword v16, v%d, %s, s%d offen' % (vQSw, sr(sWS, 4), sQ1)])
            E('s_mov_b64 exec, -1')
            stamp('A_q1')
            E('s_lshl_b32 s%d, s%d, 10\ns_add_u32 s%d, s%d, s%d' % (sT2, sB, sT2, sT2, sQ1))
            settag(vTg, 1)

            def qloads():
                for c in range(4):
                    E(('buffer_load_dwordx4 %s, v%d, %s, s%d offen offset:%d @@' % (vr(QF + 4 * c, 4), vQf, sr(sWS, 4), sT2, 256 * c)).replace('@@', lpol))
            E('s_mov_b64 exec, %s' % sr(sMN4, 2))
            poll(qloads, lambda: check_sent(list(range(QF, QF + 16)), vAcc), 'q')
            E('s_mov_b64 exec, -1')
            stamp('A_qg')
            if not maybe_stop('QS1'):
                scores_softmax(2)
                E('s_waitcnt lgkmcnt(0)')
                E('s_barrier')
                stamp('A_b6')
                PFb = [16, 64]
                for t in range(4):
                    E('ds_read_b128 %s, v%d offset:%d' % (vr(PFb[0] + 4 * t, 4), vPXr, t * 64))
                for s in coef_reads():
                    E(s)
                co = coef_ops()
                fill = []
                for wp in range(4):
                    pf = PFb[wp & 1]
                    nxt = []
                    if wp < 3:
                        nxt = ['ds_read_b128 %s, v%d offset:%d' % (vr(PFb[(wp + 1) & 1] + 4 * t, 4), vPXr, (wp + 1) * 1024 + t * 64) for t in range(4)]
                    if wp == 0:
                        E('s_waitcnt lgkmcnt(4)')
                    else:
                        E('s_waitcnt lgkmcnt(0)')
                    k = 0
                    for t in range(4):
                        for e in range(2):
                            E('v_mfma_f32_16x16x32_bf16 %s, %s, %s, %s' % (vr(acc(wp, e), 4), vr(fragreg[(wp, t, e)], 4), vr(pf + 4 * t, 4), '0' if t == 0 else vr(acc(wp, e), 4)))
                            k += 1
                            if wp == 0 and k == 1:
                                E('s_waitcnt lgkmcnt(0)')
                                fill = list(co)
                            if k >= 2 and nxt:
                                E(nxt.pop(0))
                            for _ in range(2):
                                if fill:
                                    E(fill.pop(0))
                    if wp == 1:
                        while fill:
                            E(fill.pop(0))
                        fill = fin_ops(0, 104)
                    elif wp == 2:
                        fill = fill + fin_ops(1, 104) + fin_ops(2, 104)
                while fill:
                    E(fill.pop(0))
                for s in fin_ops(3, 104):
                    E(s)
                stamp('A_pv2')
                publish_O(104)
                E('s_barrier')
                if not maybe_stop('OS1'):
                    ffn_half(1)
        finish_wave()

    subs()
    E('L_B:')
    WQ, WG, WO, WD = 128, 144, 160, 176
    XRES, ACT = 208, 212
    DA = 216
    srd(sWS, 26, WS_USED)

    def prewrite(arrs=(0, 1, 2, 3), wave=2):
        skip = E.label('Lk')
        E('s_cmp_lg_u32 s%d, %d\ns_cbranch_scc1 %s' % (sW, wave, skip))
        E('s_lshl_b32 s%d, s%d, 15\ns_lshl_b32 s%d, s%d, 8\ns_add_u32 s%d, s%d, s%d' % (sT0, sJ, sT1, sX, sT0, sT0, sT1))
        E('v_lshl_add_u32 v9, v12, 11, v3\nv_add_u32 v9, s%d, v9\nv_add_u32 v10, 16384, v9' % sT0)
        E('v_mov_b32 v20, -1\nv_mov_b32 v21, -1\nv_mov_b32 v22, -1\nv_mov_b32 v23, -1')
        for n in [q for q in arrs if q < 3]:
            E('s_mov_b32 s%d, %d' % (sXn[n], XA + 0x100000 * xarr[n]))
            for a_ in (9, 10):
                E(('buffer_load_dwordx4 v[20:23], v%d, %s, s%d offen ' + prd if prd != 'w' else 'buffer_store_dwordx4 v[20:23], v%d, %s, s%d offen sc1') % (a_, sr(sWS, 4), sXn[n]))
        if 3 not in arrs:
            E(skip + ':')
            return
        E('s_mov_b32 s%d, %d' % (sXn[3], XA + 0x100000 * xarr[3]))
        E('s_and_b32 s%d, s%d, 3\ns_lshl_b32 s%d, s%d, 11\ns_add_u32 s%d, s%d, s%d\ns_and_b32 s%d, s%d, 4\ns_lshl_b32 s%d, s%d, 12\ns_add_u32 s%d, s%d, s%d' % (sT1, sJ, sT1, sT1, sT0, sT0, sT1, sT1, sJ, sT1, sT1, sT0, sT0, sT1))
        E('v_add_u32 v9, s%d, v3\ns_mov_b64 exec, 0xffff' % sT0)
        E(('buffer_load_dwordx4 v[20:23], v9, %s, s%d offen ' + prd if prd != 'w' else 'buffer_store_dwordx4 v[20:23], v9, %s, s%d offen sc1') % (sr(sWS, 4), sXn[3]))
        E('s_mov_b64 exec, -1')
        E(skip + ':')

    lj = E.label('Lk')
    E('s_cmp_lg_u32 s%d, %d\ns_cbranch_scc1 %s' % (sW, 9 if nopf else 1, lj))
    E('s_getpc_b64 s[100:101]\nL_pc:\ns_sub_u32 s100, s100, L_pc-%s_kernel\ns_subb_u32 s101, s101, 0' % KNAME)
    E('s_lshl_b32 s%d, s%d, 10\ns_min_u32 s%d, s%d, L_codeend-%s_kernel-1024' % (sT0, sJ, sT0, sT0, KNAME))
    E('v_add_u32 v9, s%d, v%d\nglobal_load_dwordx4 v[124:127], v9, s[100:101]' % (sT0, bL16))
    E(lj + ':')
    if tlb:
        skip = E.label('Lk')
        E('s_cmp_lg_u32 s%d, 2\ns_cbranch_scc1 %s' % (sW, skip))
        E('s_lshl_b32 s%d, s%d, 19\nv_mov_b32 v9, s%d\nv_mov_b32 v11, 0\ns_mov_b64 exec, 1' % (sT0, sX, sT0))
        E('global_load_dword v124, v9, s[12:13] nt\nglobal_load_dword v125, v11, s[20:21] nt\nglobal_load_dword v126, v11, s[22:23] nt')
        E('v_mov_b32 v9, %d\nv_mov_b32 v11, %d' % (RB + 0x100, XA))
        E('global_load_dword v127, v9, s[26:27] nt\nglobal_load_dword v123, v11, s[26:27] nt\ns_mov_b64 exec, -1')
        E(skip + ':')
    srd(sBv, 16, 1835008); srd(sC, 18, 1835008)
    E('s_mul_i32 s%d, s%d, %d\ns_mul_i32 s%d, s%d, 448\ns_add_u32 s%d, s%d, s%d\ns_lshl_b32 s%d, s%d, 7\ns_add_u32 s%d, s%d, s%d' % (sT0, sJ, 16 * 3584, sT1, sX, sT0, sT0, sT1, sT1, sW, sT0, sT0, sT1))
    set_mask(sM1, 0x0F0F0F0F0F0F0F0F)
    E('s_cmp_eq_u32 s%d, 3\ns_cselect_b64 exec, %s, -1' % (sW, sr(sM1, 2)))
    for mtx in range(2):
        for i in range(2):
            E('s_add_u32 m0, s%d, %d\ns_add_u32 s%d, s%d, %d' % (sT3, S1 + 2048 * mtx + 1024 * i, sT1, sT0, i * 8 * 3584))
            E('buffer_load_dwordx4 v5, %s, s%d offen %s lds' % (sr(sBv if mtx == 0 else sC, 4), sT1, wpol))
    E('s_mov_b64 exec, -1')
    sGWv, sGWb = 100, 101
    E('s_getreg_b32 s%d, hwreg(HW_REG_XCC_ID, 0, 4)\ns_and_b32 s%d, s%d, 7' % (sT0, sT0, sT0))
    E('s_lshl_b32 s%d, s%d, 12\ns_add_u32 s%d, s%d, %d' % (sGWb, sX, sGWb, sGWb, GW))
    E('s_waitcnt lgkmcnt(0)')
    E('s_mul_i32 s%d, s%d, 0x9e3779b1\ns_add_u32 s%d, s%d, 0x7f4a7c15\ns_and_b32 s%d, s%d, -8\ns_or_b32 s%d, s%d, s%d' % (sGWv, sE, sGWv, sGWv, sGWv, sGWv, sGWv, sGWv, sT0))
    skip = E.label('Lk')
    E('s_cmp_lg_u32 s%d, %d\ns_cbranch_scc1 %s' % (sW, 9 if (noclr or not xc & 4) else 3, skip))
    E('s_lshl_b32 s%d, s%d, 2\nv_mov_b32 v44, s%d\nv_mov_b32 v45, s%d\ns_mov_b64 exec, 1' % (sT0, sJ, sT0, sGWv))
    E('buffer_store_dword v45, v44, %s, s%d offen sc1\ns_mov_b64 exec, -1' % (sr(sWS, 4), sGWb))
    E(skip + ':')
    bQSw = 101
    bTrW, bTrG, bTrD = 102, 103, 104
    bSPush, bSPull, bXr, bOSr, bLSr, bRG, bSTw, bTrO, bMean, bMu, bMacc, bOut, bRDs = range(105, 118)
    RM = 96
    bTg, bAcc, bT2, bGW = 118, 119, 120, 121
    sCSb, sCMb, sR4push = sM2, sM2 + 1, sM3
    sG4 = sM3 + 1
    E('s_mul_i32 s%d, s%d, %d\ns_add_u32 s%d, s%d, %d\ns_add_u32 s%d, s%d, %d\ns_mov_b32 s%d, 0xffffff00' % (sR0, sX, RX, sR0, sR0, RB, sR4push, sR0, 4 * RU, sMsk))
    E('v_bfe_u32 v46, v1, 2, 2\nv_lshlrev_b32 v47, 3, v14\nv_lshl_add_u32 v47, v12, 5, v47')
    E('v_lshl_add_u32 v%d, v46, 8, v47\ns_add_u32 s%d, s%d, %d\nv_add_u32 v%d, s%d, v%d' % (bTrW, sT0, sT3, S0, bTrW, sT0, bTrW))
    E('s_lshl_b32 s%d, s%d, 3\nv_add_u32 v48, s%d, v12' % (sT0, sW, sT0))
    E('v_mul_u32_u24 v%d, %d, v48\nv_add_u32 v%d, v%d, v3\ns_lshl_b32 s%d, s%d, 8\nv_add_u32 v%d, s%d, v%d' % (bSPush, RU, bSPush, bSPush, sT1, sJ, bSPush, sT1, bSPush))
    E('v_mov_b32 v34, 0x3f803f80\nv_mov_b32 v35, 0\nv_mov_b32 v36, 0')
    E('s_waitcnt vmcnt(8)')
    stamp('B_x')
    for k in range(4):
        E('v_dot2_f32_bf16 v35, v%d, v34, v35' % (16 + k))
    for k in range(4):
        E('v_dot2_f32_bf16 v36, v%d, v%d, v36' % (16 + k, 16 + k))
    for r in (35, 36):
        E('v_add_f32_dpp v%d, v%d, v%d quad_perm:[1,0,3,2] %s' % (r, r, r, DPPM))
        E('v_add_f32_dpp v%d, v%d, v%d quad_perm:[2,3,0,1] %s' % (r, r, r, DPPM))
        allred_dpp('v_add_f32', r); allred_rows('v_add_f32', r, 37)
    E('v_mul_f32 v40, 0x%x, v35' % f32(1 / 512.))
    E('v_mul_f32 v37, v40, v40\nv_mov_b32 v38, 0x%x\nv_fma_f32 v36, v36, v38, -v37' % f32(1 / 512.))
    E('v_max_f32 v36, 0, v36\nv_add_f32 v36, 0x%x, v36\nv_rsq_f32 v36, v36\nv_mul_f32 v41, 0x%x, v36' % (f32(1e-5), f32(SCALE)))
    E('v_mov_b32 v42, 1\nv_mov_b32 v43, 1\ns_lshl_b32 s%d, s%d, 4\ns_add_u32 s%d, s%d, %d\nv_mov_b32 v37, s%d' % (sT0, sW, sT0, sT0, LDS_HS, sT0))
    E('ds_write_b128 v37, v[40:43]')
    E('v_lshlrev_b32 v37, 4, v14\nv_add_u32 v37, %d, v37' % LDS_HS)

    def unpack_x(src):
        E('v_lshlrev_b32 v%d, 16, v%d\nv_and_b32 v%d, 0xffff0000, v%d' % (XRES, src, XRES + 1, src))
        E('v_lshlrev_b32 v%d, 16, v%d\nv_and_b32 v%d, 0xffff0000, v%d' % (XRES + 2, src + 1, XRES + 3, src + 1))
    unpack_x(32)

    def wreg(W, t, k):
        return W + 8 * t + 2 * k

    def tr_std(W, base_off):
        for t in range(2):
            for k in range(4):
                E('ds_read_b64_tr_b16 %s, v%d offset:%d' % (vr(wreg(W, t, k), 2), bTrW, base_off + 1024 * k + 128 * t))

    def gemv16(W, act, d0, fill=()):
        fill = list(fill)
        for k in range(4):
            for t in range(2):
                E('v_mfma_f32_4x4x4_16b_bf16 %s, %s, %s, %s blgp:%d' % (vr(d0 + 4 * t, 4), vr(wreg(W, t, k), 2), vr(act, 2), '0' if k == 0 else vr(d0 + 4 * t, 4), 4 + k))
                if fill:
                    E(fill.pop(0))
        for f_ in fill:
            E(f_)

    def push_stores(d0, second=True):
        o = ['buffer_store_dwordx4 %s, v%d, %s, s%d offen' % (vr(d0, 4), bSPush, sr(sWS, 4), sR0)]
        if second:
            o.append('buffer_store_dwordx4 %s, v%d, %s, s%d offen' % (vr(d0 + 4, 4), bSPush, sr(sWS, 4), sR4push))
        return o

    def l_gw(r):
        E(('buffer_load_dword v%d, v%d, %s, s%d offen @@' % (r, bGW, sr(sWS, 4), sGWb)).replace('@@', lpol))

    def c_gw(r):
        E('v_xor_b32 v%d, s%d, v%d\nv_cmp_ne_u32 vcc, 0, v%d\ns_cmp_eq_u64 vcc, 0\ns_cselect_b32 s%d, %d, 0' % (bAcc, sGWv, r, bAcc, sMode, 0 if force_slow else 1))
        E('v_cmp_lt_u32 vcc, 7, v%d' % bAcc)
    settag(bTg, 0)
    top = E.label('Lh')
    E('s_mov_b32 s%d, 0\n%s:\nds_read_b128 v[40:43], v37\ns_add_u32 s%d, s%d, 1\ns_cmp_gt_u32 s%d, 0x8000\ns_cbranch_scc1 L_fail' % (sCnt, top, sCnt, sCnt, sCnt))
    E('s_waitcnt lgkmcnt(0)\nv_cmp_ne_u32 vcc, 1, v42\ns_cbranch_vccnz %s' % top)
    E('v_readlane_b32 s%d, v41, s%d' % (sSig, sB))
    for k in range(4):
        E('v_sub_f32 v%d, v%d, v40' % (XRES + k, XRES + k))
    E('v_cvt_pk_bf16_f32 v%d, v%d, v%d\nv_cvt_pk_bf16_f32 v%d, v%d, v%d\nv_mov_b32 v%d, v40' % (ACT, XRES, XRES + 1, ACT + 1, XRES + 2, XRES + 3, bMean))
    E('s_waitcnt vmcnt(4)')
    stamp('B_wq')
    tr_std(WQ, 0)
    E('s_waitcnt lgkmcnt(0)')
    gemv16(WQ, ACT, DA)
    tag(range(DA, DA + 8), bTg)
    for st in push_stores(DA):
        if nob != 3:
            E(st)
    stamp('B_rq0')
    common_consts()
    srd(sOUT, 22, 4096); srd(sD, 20, 1835008)
    E('v_bfe_u32 v41, v1, 2, 2')
    E('v_lshlrev_b32 v42, 3, v14\nv_lshl_add_u32 v42, v12, 5, v42')
    E('v_and_b32 v43, 1, v14\nv_lshlrev_b32 v43, 3, v43\nv_lshl_add_u32 v43, v12, 4, v43\nv_lshrrev_b32 v44, 1, v14\nv_lshl_add_u32 v43, v44, 11, v43')
    E('v_lshl_add_u32 v%d, v41, 7, v43\nv_add_u32 v%d, s%d, v%d\nv_add_u32 v%d, %d, v%d' % (bTrG, bTrG, sT3, bTrG, bTrG, S1, bTrG))
    E('v_and_b32 v43, 1, v41\nv_lshlrev_b32 v43, 1, v43\nv_lshrrev_b32 v44, 1, v41\nv_or_b32 v43, v43, v44')
    E('v_lshl_add_u32 v%d, v43, 10, v42\nv_add_u32 v%d, %d, v%d' % (bTrD, bTrD, LDS_WD, bTrD))
    E('s_lshl_b32 s%d, s%d, 3\nv_add_u32 v43, s%d, v12' % (sT0, sW, sT0))
    E('s_mul_i32 s%d, s%d, %d\nv_lshl_add_u32 v%d, v43, 8, v3\nv_add_u32 v%d, s%d, v%d' % (sT1, sJ, RU, bSPull, bSPull, sT1, bSPull))
    E('v_lshlrev_b32 v%d, 4, v1\nv_add_u32 v%d, s%d, v%d' % (bRDs, bRDs, sT1, bRDs))
    E('s_lshl_b32 s%d, s%d, 8\ns_add_u32 s%d, s%d, %d\nv_lshl_add_u32 v%d, v41, 10, v42\nv_add_u32 v%d, s%d, v%d' % (sT0, sW, sT0, sT0, S0, bTrO, bTrO, sT0, bTrO))
    E('v_lshlrev_b32 v44, 4, v14\nv_lshl_add_u32 v44, v12, 6, v44\nv_lshl_add_u32 v45, v41, 8, v44')
    E('s_lshl_b32 s%d, s%d, 15\ns_and_b32 s%d, s%d, 3\ns_lshl_b32 s%d, s%d, 11\ns_add_u32 s%d, s%d, s%d' % (sT0, sJ, sT1, sX, sT1, sT1, sT0, sT0, sT1))
    E('s_and_b32 s%d, s%d, 4\ns_lshl_b32 s%d, s%d, 12\ns_add_u32 s%d, s%d, s%d\nv_add_u32 v%d, s%d, v45' % (sT1, sX, sT1, sT1, sT0, sT0, sT1, bXr, sT0))
    E('s_mul_i32 s%d, s%d, %d\nv_add_u32 v%d, s%d, v45' % (sT1, sJ, RU, bRG, sT1))
    E('v_mul_u32_u24 v44, 320, v41\nv_lshl_add_u32 v44, v14, 4, v44\ns_mul_i32 s%d, s%d, %d\nv_add_u32 v%d, s%d, v44' % (sT0, sJ, OSC, bLSr, sT0))
    E('v_lshl_add_u32 v%d, v12, 6, v%d' % (bOSr, bLSr))
    E('v_lshrrev_b32 v44, 5, v1\nv_lshlrev_b32 v44, 4, v44\nv_lshl_add_u32 v44, v14, 2, v44\ns_lshl_b32 s%d, s%d, 5\nv_add_u32 v%d, s%d, v44' % (sT0, sJ, bSTw, sT0))
    if fullx:
        E('v_lshlrev_b32 v44, 4, v14\nv_lshl_add_u32 v44, v12, 7, v44\nv_lshl_add_u32 v44, v41, 9, v44')
        E('s_lshl_b32 s%d, s%d, 3\ns_add_u32 s%d, s%d, s%d\ns_lshl_b32 s%d, s%d, 12\nv_add_u32 v%d, s%d, v44' % (sT0, sJ, sT0, sT0, sX, sT0, sT0, bXr, sT0))
    if xsel:
        E('v_add_u32 v%d, 8192, v%d' % (bXr, bXr))
    E('v_mov_b32 v%d, v8' % bOut)
    E('v_and_b32 v%d, 31, v1\nv_lshlrev_b32 v%d, 2, v%d' % (bGW, bGW, bGW))
    E('s_add_u32 s%d, s%d, %d' % (sR4push, sR0, 4 * RU))
    E('s_cmp_eq_u32 s%d, 3\ns_cselect_b32 s%d, %d, s%d' % (sW, sG4, WS_USED, sR4push))

    E('v_lshrrev_b32 v44, 5, v1\nv_lshlrev_b32 v44, 6, v44\nv_and_b32 v45, 1, v12\nv_lshl_add_u32 v44, v45, 3, v44\nv_lshl_add_u32 v44, v14, 10, v44')
    E('s_and_b32 s%d, s%d, 7\ns_lshl_b32 s%d, s%d, 7\ns_lshl_b32 s%d, s%d, 4\ns_add_u32 s%d, s%d, s%d\nv_add_u32 v%d, s%d, v44' % (sT0, sJ, sT0, sT0, sT1, sB, sT0, sT0, sT1, bQSw, sT0))
    E('s_waitcnt vmcnt(2)')
    for t in range(2):
        for k in range(4):
            E('ds_read_b64_tr_b16 %s, v%d offset:%d' % (vr(wreg(WG, t, k), 2), bTrG, 512 * k + 64 * t))
    E('s_waitcnt lgkmcnt(0)')
    E('v_mov_b32 v9, %d\nv_mov_b32 v10, 1\ns_mov_b64 exec, 1\nds_add_u32 v9, v10\ns_mov_b64 exec, -1' % LDS_GC)
    stamp('B_gu')

    if prew == 2:
        prewrite()
    if nob >= 2:
        E('s_branch L_nob')

    def backoff_poll(loads, chk, first, again):
        top = E.label('Lp'); ok = E.label('Lo')
        E('s_mov_b32 s%d, 0\ns_sleep %d\n%s:' % (sCnt, first, top))
        loads()
        E('s_waitcnt vmcnt(0)')
        chk()
        E('s_cbranch_vccz %s\ns_sleep %d\ns_add_u32 s%d, s%d, 1\ns_cmp_lt_u32 s%d, 0x1000\ns_cbranch_scc1 %s\ns_branch L_fail\n%s:' % (ok, again, sCnt, sCnt, sCnt, top, ok))

    def rg_loads(pol=lpol):
        for i in range(8):
            E('buffer_load_dwordx4 %s, v%d, %s, s%d offen offset:%d %s' % (vr(16 + 4 * i, 4), bRG, sr(sWS, 4), sR0 if i < 4 else sR16push, 1024 * (i & 3), pol))

    def rg_sum():
        for st in (16, 8, 4):
            for i in range(st):
                E('v_add_f32 v%d, v%d, v%d' % (16 + i, 16 + i, 16 + st + i))
        for ro in (4, 8):
            for k in range(4):
                E('v_add_f32_dpp v%d, v%d, v%d row_ror:%d %s' % (16 + k, 16 + k, 16 + k, ro, DPPM))

    def restore():
        for st in push_stores(DA):
            E(st + ' sc1')

    def restore_if_slow():
        done = E.label('Lk')
        E('s_cmp_lg_u32 s%d, 0\ns_cbranch_scc1 %s' % (sMode, done))
        restore()
        E(done + ':')

    w0 = E.label('Lw'); join = E.label('Lj')
    E('s_cmp_eq_u32 s%d, 0\ns_cbranch_scc1 %s' % (sW, w0))
    if xa & 2:
        backoff_poll(lambda: l_gw(48), lambda: c_gw(48), cfirst, 8)
        restore_if_slow()
    if prew == 3:
        prewrite()
    E('s_cmp_lg_u32 s%d, 1\ns_cbranch_scc1 %s' % (sW, join))
    E('v_mov_b32 v10, -1\nv_bfe_u32 v9, v1, 3, 2\nv_lshlrev_b32 v9, 10, v9\nv_lshl_add_u32 v9, v14, 2, v9\nv_bfe_u32 v11, v1, 2, 1\nv_lshl_add_u32 v9, v11, 6, v9')
    E('s_and_b32 s%d, s%d, 7\ns_lshl_b32 s%d, s%d, 7\ns_lshl_b32 s%d, s%d, 4\ns_add_u32 s%d, s%d, s%d\ns_add_u32 s%d, s%d, s%d' % (sT0, sJ, sT0, sT0, sT1, sB, sT0, sT0, sT1, sT2, sT0, sQ1))
    E('s_mov_b32 exec_hi, 0')
    lstore(['buffer_store_dword v10, v9, %s, s%d offen' % (sr(sWS, 4), sT2)])
    E('s_mov_b64 exec, -1')
    E('s_branch %s' % join)
    E(w0 + ':')
    sRest = sDBG

    def l_a():
        if xa & 2:
            l_gw(48)
        if xa & 1:
            rg_loads(apol)

    def c_a():
        if xa != 7:
            E('s_mov_b32 s%d, 1\ns_mov_b64 vcc, 0' % sMode)
            return
        c_gw(48)
        E('s_mov_b64 %s, vcc' % sr(sM1, 2))
        back = E.label('Lb')
        E('s_cbranch_vccnz %s\ns_or_b32 s%d, s%d, s%d\ns_cbranch_scc1 %s' % (back, sT0, sMode, sRest, back))
        restore()
        E('s_mov_b32 s%d, 1\n%s:' % (sRest, back))
        check(list(range(16, 48)), bTg, bAcc)
        E('s_or_b64 vcc, vcc, %s' % sr(sM1, 2))
    E('s_mov_b32 s%d, 0' % sRest)
    backoff_poll(l_a, c_a, afirst, agap)
    if stamps and not dbgst and not light:
        E('s_add_u32 s96, s%d, 1\nv_writelane_b32 v%d, s96, 60' % (sCnt, vStamp))
    rg_sum()
    E('s_lshr_b32 s%d, s%d, 16\nv_mov_b32 v49, s%d\ns_mov_b32 s%d, 0x07060100' % (sT0, sGWv, sT0, sT1))
    for k in range(4):
        E('v_cvt_pk_bf16_f32 v%d, v%d, v%d' % (16 + k, 16 + k, 16 + k))
    for k in range(4):
        E('v_perm_b32 v%d, v%d, v49, s%d' % (16 + k, 16 + k, sT1))
    E('s_lshl_b32 s%d, s%d, 13\ns_add_u32 s%d, s%d, %d\nv_lshlrev_b32 v9, 1, v%d' % (sT2, sX, sT2, sT2, Q0A, bQSw))
    E('s_mov_b64 exec, %s' % sr(sMN4, 2))
    lstore(['buffer_store_dwordx4 v[16:19], v9, %s, s%d offen' % (sr(sWS, 4), sT2)])
    E('s_mov_b64 exec, -1')
    stamp('B_q0')
    E('s_lshl_b32 s%d, s%d, 11\ns_add_u32 s%d, s%d, s%d\nv_lshlrev_b32 v9, 5, v1' % (sT0, sB, sT2, sT2, sT0))

    def l_b(b):
        E('buffer_load_dwordx4 %s, v9, %s, s%d offen %s' % (vr(b, 4), sr(sWS, 4), sT2, apol))
        E('buffer_load_dwordx4 %s, v9, %s, s%d offen offset:16 %s' % (vr(b + 4, 4), sr(sWS, 4), sT2, apol))

    def c_b(b):
        E('v_xor_b32 v%d, v%d, v49' % (bAcc, b))
        for r in range(b + 1, b + 8):
            E('v_bitop3_b32 v%d, v%d, v%d, v49 bitop3:0xf6' % (bAcc, bAcc, r))
        E('v_and_b32 v%d, 0xffff, v%d\nv_cmp_ne_u32 vcc, 0, v%d' % (bAcc, bAcc, bAcc))
    poll_pipe(2, 8, 224, l_b, c_b, 24, 8, bD, bfirst, bgap)
    E('s_mov_b32 s%d, 0x07060302' % sT1)
    for k in range(4):
        E('v_perm_b32 v%d, v%d, v%d, s%d' % (20 + k, 25 + 2 * k, 24 + 2 * k, sT1))
    lds_wait(LDS_GC, 4, 9, 10)
    E('v_add_u32 v9, %d, v%d\nds_write_b128 v9, v[20:23]' % (LDS_Q, bL16))
    E('v_mov_b32 v9, %d\nv_mov_b32 v20, s%d\nv_mov_b32 v21, s%d\nds_write_b64 v9, v[20:21]' % (LDS_SIG, sSig, sMode))
    E('v_mov_b32 v9, %d\nv_mov_b32 v10, 1\ns_waitcnt lgkmcnt(0)\nds_write_b32 v9, v10' % LDS_QF)
    stamp('B_qg0')
    E(join + ':')

    def wo_loads():
        srd(sA, 12, 4194304)
        E('s_lshl_b32 s%d, s%d, 19\ns_lshl_b32 s%d, s%d, 14\ns_add_u32 s%d, s%d, s%d\ns_add_u32 s%d, s%d, s%d' % (sT0, sX, sT1, sJ, sT0, sT0, sT1, sT0, sT0, sT3))
        for i in range(4):
            E('s_add_u32 m0, s%d, %d\ns_add_u32 s%d, s%d, %d' % (sT3, S0 + 1024 * i, sT1, sT0, i * 1024))
            E('buffer_load_dwordx4 v%d, %s, s%d offen %s lds' % (bL16, sr(sA, 4), sT1, wpol))

    def row_means(vaddr, off, d):
        for i in range(4):
            E('ds_read_b128 %s, v%d offset:%d' % (vr(48 + 4 * i, 4), vaddr, off + 1024 * i))
        E('v_mov_b32 v47, 0x3f803f80')
        for i in range(4):
            E('s_waitcnt lgkmcnt(%d)' % (3 - i))
            E('v_dot2_f32_bf16 v%d, v%d, v47, 0' % (d + i, 48 + 4 * i))
        for q in range(1, 4):
            for i in range(4):
                E('v_dot2_f32_bf16 v%d, v%d, v47, v%d' % (d + i, 48 + 4 * i + q, d + i))
        E('v_permlane32_swap_b32 v%d, v%d\nv_permlane32_swap_b32 v%d, v%d' % (d, d + 2, d + 1, d + 3))
        E('v_add_f32 v%d, v%d, v%d\nv_add_f32 v%d, v%d, v%d' % (d, d, d + 2, d + 1, d + 1, d + 3))
        E('v_permlane16_swap_b32 v%d, v%d\nv_add_f32 v%d, v%d, v%d' % (d, d + 1, d, d, d + 1))
        allred_dpp('v_add_f32', d)
        E('v_add_f32_dpp v%d, v%d, v%d quad_perm:[1,0,3,2] %s' % (d, d, d, DPPM))
        E('v_add_f32_dpp v%d, v%d, v%d quad_perm:[2,3,0,1] %s' % (d, d, d, DPPM))
        E('v_mul_f32 v%d, 0x%x, v%d' % (d, f32(1 / 512.), d))

    def wd_loads():
        skip = E.label('Lk')
        E('s_cmp_lg_u32 s%d, 3\ns_cbranch_scc1 %s\ns_cmp_ge_u32 s%d, 28\ns_cbranch_scc1 %s' % (sW, skip, sJ, skip))
        E('s_mul_i32 s%d, s%d, %d\ns_lshl_b32 s%d, s%d, 13\ns_add_u32 s%d, s%d, s%d' % (sT0, sX, 224 * 1024, sT1, sJ, sT0, sT0, sT1))
        for i in range(8):
            E('s_mov_b32 m0, %d\ns_add_u32 s%d, s%d, %d' % (LDS_WD + 1024 * i, sT1, sT0, i * 1024))
            E('buffer_load_dwordx4 v%d, %s, s%d offen %s lds' % (bL16, sr(sD, 4), sT1, wpol))
        E(skip + ':')

    def wd_frags():
        skip = E.label('Lk')
        E('s_cmp_lg_u32 s%d, 3\ns_cbranch_scc1 %s' % (sW, skip))
        for t in range(8):
            for q in range(2):
                E('ds_read_b64_tr_b16 %s, v%d offset:%d' % (vr(WD + 4 * t + 2 * q, 2), bTrD, 4096 * q + 128 * t))
        E('v_add_u32 v9, %d, v%d' % (LDS_WD, bL16))
        row_means(9, 0, 64)
        row_means(9, 4096, 68)
        E('v_lshlrev_b32 v9, 2, v12\nv_add_u32 v9, %d, v9\nds_write2_b32 v9, v64, v68 offset0:0 offset1:4' % LDS_WD)
        E('v_and_b32 v9, 1, v12\nv_lshlrev_b32 v9, 4, v9\nv_lshrrev_b32 v10, 1, v12\nv_lshl_add_u32 v9, v10, 2, v9\nv_add_u32 v9, %d, v9' % LDS_WD)
        E('s_waitcnt lgkmcnt(0)\nds_read2_b32 v[10:11], v9 offset0:0 offset1:2\ns_waitcnt lgkmcnt(0)\nv_mov_b32 v100, v10\nv_mov_b32 v123, v11')
        E(skip + ':')

    def touch_inbox():
        skip = E.label('Lk')
        E('s_cmp_lg_u32 s%d, 0\ns_cbranch_scc1 %s' % (sW, skip))
        E('s_mul_i32 s%d, s%d, %d\ns_add_u32 s%d, s%d, s%d' % (sT0, sJ, OSC, sT0, sT0, sOSb))
        for o in (0, 1024, 1536):
            E('buffer_load_dwordx4 v[124:127], v%d, %s, s%d offen offset:%d %s' % (bL16, sr(sWS, 4), sT0, o, tpol))
        E(skip + ':')

    def touch_shared():
        skip = E.label('Lk')
        E('s_cmp_lg_u32 s%d, 1\ns_cbranch_scc1 %s' % (sW, skip))
        E('s_lshl_b32 s%d, s%d, 7\ns_add_u32 s%d, s%d, s%d\nv_mov_b32 v9, s%d' % (sT0, sJ, sT1, sT0, sQ1, sT1))
        E('s_lshr_b32 s%d, s%d, 3\ns_min_u32 s%d, s%d, 2\ns_lshl_b32 s%d, s%d, 13\ns_and_b32 s%d, s%d, 0x380\ns_add_u32 s%d, s%d, s%d\ns_add_u32 s%d, s%d, s%d\nv_writelane_b32 v9, s%d, 1' % (sT1, sJ, sT1, sT1, sT1, sT1, sT0, sT0, sT1, sT1, sT0, sT1, sT1, sSTb, sT1))
        E('s_mov_b64 exec, 3\nbuffer_load_dword v124, v9, %s, 0 offen %s\ns_mov_b64 exec, -1' % (sr(sWS, 4), tpol))
        E(skip + ':')

    E('L_nob:')
    E('s_waitcnt lgkmcnt(0)')
    stamp('B_init')
    lds_wait(LDS_GC, 4, 9, 10)
    lds_wait(LDS_AI, 4, 9, 10, 4)
    wo_loads()
    if prew == 4:
        prewrite()
    touch_inbox()
    if touchR:
        E('s_mul_i32 s%d, s%d, %d\ns_lshl_b32 s%d, s%d, 11\ns_add_u32 s%d, s%d, s%d\ns_add_u32 s%d, s%d, s%d' % (sT0, sJ, RU, sT1, sW, sT0, sT0, sT1, sT0, sT0, sR0))
        for o in (0, 1024):
            E('buffer_load_dwordx4 v[124:127], v%d, %s, s%d offen offset:%d %s' % (bL16, sr(sWS, 4), sT0, o, tpol))
    touch_shared(); wd_loads()
    E('v_mov_b32 v%d, 0\ns_add_u32 s%d, s%d, %d\nv_add_u32 v9, s%d, v%d' % (bMu, sT0, sT3, S0, sT0, bL16))
    E('v_lshlrev_b32 v10, 2, v12\ns_lshl_b32 s%d, s%d, 4\ns_add_u32 s%d, s%d, %d\nv_add_u32 v10, s%d, v10' % (sT0, sW, sT0, sT0, LDS_RM, sT0))
    E('s_waitcnt vmcnt(0)')
    row_means(9, 0, 64)
    E('ds_write_b32 v10, v64')
    if probe:
        def pr(addrv, sb, idx):
            for rep in range(2):
                E('s_memtime s[4:5]\ns_waitcnt lgkmcnt(0)\nbuffer_load_dwordx4 v[16:19], v%d, %s, s%d offen nt\ns_waitcnt vmcnt(0)\ns_memtime s[6:7]\ns_waitcnt lgkmcnt(0)' % (addrv, sr(sWS, 4), sb))
                E('s_sub_u32 s4, s6, s4\nv_writelane_b32 v%d, s4, %d' % (vStamp, idx + rep))
        E('s_sleep 40')
        E('s_lshl_b32 s%d, s%d, 10\ns_add_u32 s%d, s%d, s%d' % (sT2, sB, sT2, sT2, sQ1))
        pr(bL16, sT2, 50)
        pr(bRG, sR0, 52)
        E('s_add_u32 s%d, s%d, 16384' % (sT2, sSTb))
        pr(bL16, sT2, 54)
        pr(bOSr, sOSb, 56)
    E('s_waitcnt lgkmcnt(0)')
    stamp('B_w')

    def oproj(layer):
        settag(bTg, layer); settag(bT2, 1 + 4 * layer)
        E('s_barrier')
        stamp('B_f%d' % layer)
        if stop == 'OS%d' % layer:
            return True

        nl = 4 if layer == 0 else 1

        def loads():
            for i in range(2):
                E('buffer_load_dword%s %s, v%d, %s, s%d offen offset:%d %s' % ('x4' if nl == 4 else '', vr(24 + 4 * i, nl), bLSr, sr(sWS, 4), sOSb, 256 + 1280 * i, lpol))
            for i in range(2):
                E('buffer_load_dwordx4 %s, v%d, %s, s%d offen offset:%d %s' % (vr(16 + 4 * i, 4), bOSr, sr(sWS, 4), sOSb, 1280 * i, lpol))
        if layer == 0:
            for t in range(2):
                for k in range(4):
                    E('ds_read_b64_tr_b16 %s, v%d offset:%d' % (vr(wreg(WO, t, k), 2), bTrO, 4096 * k + 128 * t))
            E('v_lshlrev_b32 v9, 4, v12\nv_add_u32 v9, %d, v9\nds_read_b128 %s, v9' % (LDS_RM, vr(RM, 4)))
        poll(loads, lambda: check(list(range(16, 24)) + list(range(24, 24 + nl)) + list(range(28, 28 + nl)), bTg, bAcc), 'os%d' % layer)
        stamp('B_og%d' % layer)
        E('v_max_f32 v26, v24, v28')
        allred_dpp('v_max_f32', 26)
        E('v_sub_f32 v24, v24, v26\nv_sub_f32 v25, v28, v26\nv_exp_f32 v24, v24\nv_exp_f32 v25, v25')
        for k in range(4):
            E('v_mul_f32 v%d, v24, v%d' % (16 + k, 16 + k))
        E('v_add_f32 v26, v24, v25')
        for k in range(4):
            E('v_fmac_f32 v%d, v25, v%d' % (16 + k, 20 + k))
        for ro in (4, 8):
            E('v_add_f32_dpp v26, v26, v26 row_ror:%d %s' % (ro, DPPM))
            for k in range(4):
                E('v_add_f32_dpp v%d, v%d, v%d row_ror:%d %s' % (16 + k, 16 + k, 16 + k, ro, DPPM))
        E('v_rcp_f32 v26, v26')
        for k in range(4):
            E('v_mul_f32 v%d, v%d, v26' % (16 + k, 16 + k))
        E('v_cvt_pk_bf16_f32 v%d, v16, v17\nv_cvt_pk_bf16_f32 v%d, v18, v19' % (ACT, ACT + 1))
        if layer == 0:
            E('s_waitcnt lgkmcnt(0)')
        mu = ['v_mul_f32 v26, v16, v%d' % RM] + ['v_fmac_f32 v26, v%d, v%d' % (16 + k, RM + k) for k in range(1, 4)]
        for sw in ('16', '32'):
            mu += ['v_mov_b32 v27, v26', 'v_permlane%s_swap_b32 v26, v27' % sw, 'v_add_f32 v26, v26, v27']
        gemv16(WO, ACT, DA, mu)
        for k in range(0, 8, 2):
            E('v_pk_add_f32 %s, %s, v[26:27] op_sel_hi:[1,0] neg_lo:[0,1] neg_hi:[0,1]' % (vr(DA + k, 2), vr(DA + k, 2)))
        tag(range(DA, DA + 8), bT2)
        lstore(['buffer_store_dwordx4 %s, v%d, %s, s%d offen' % (vr(DA, 4), bSPull, sr(sWS, 4), sR0),
                'buffer_store_dwordx4 %s, v%d, %s, s%d offen offset:1024' % (vr(DA + 4, 4), bSPull, sr(sWS, 4), sR0)])
        stamp('B_ro%d' % layer)
        E('s_barrier')
        if layer == 0:
            E('v_mov_b32 v%d, v26' % bMacc)
            wd_frags()
            stamp('B_ctr')
        else:
            skip = E.label('Lk')
            E('s_cmp_lg_u32 s%d, 3\ns_cbranch_scc1 %s' % (sW, skip))
            E('v_add_f32 v30, v%d, v26' % bMacc)
            settag(31, 0)
            tag([30], 31)
            E('s_add_u32 s%d, s%d, %d\ns_mov_b64 exec, 15' % (sT2, sSTb, 8192 * 2))
            lstore(['buffer_store_dword v30, v%d, %s, s%d offen' % (bSTw, sr(sWS, 4), sT2)])
            E('s_mov_b64 exec, -1')
            E(skip + ':')
        return False

    def xr(n):
        def loads():
            for i in range(2):
                E('buffer_load_dwordx4 %s, v%d, %s, s%d offen offset:%d %s' % (vr(16 + 4 * i, 4), bXr, sr(sWS, 4), sXn[n], (2048 if fullx else 1024) * i, xpol))
        poll(loads, lambda: check(list(range(16, 24)), bTg, bAcc), 'x')
        for k in range(4):
            E('v_add_f32 v%d, v%d, v%d' % (16 + k, 16 + k, 20 + k))
        for ro in (4, 8):
            for k in range(4):
                E('v_add_f32_dpp v%d, v%d, v%d row_ror:%d %s' % (16 + k, 16 + k, 16 + k, ro, DPPM))
        for k in range(4):
            E('v_add_f32 v%d, v%d, v%d' % (16 + k, 16 + k, XRES + k))
        E('v_cvt_pk_bf16_f32 v%d, v16, v17\nv_cvt_pk_bf16_f32 v%d, v18, v19' % (ACT, ACT + 1))

    def keep_x():
        for q in range(4):
            E('v_mov_b32 v%d, v%d' % (XRES + q, 16 + q))

    def publish_stats(k):
        keep_x()
        skip = E.label('Lk')
        E('s_cmp_lg_u32 s%d, 2\ns_cbranch_scc1 %s' % (sW, skip))
        E('v_mul_f32 v30, v%d, v%d' % (XRES, XRES))
        for q in range(1, 4):
            E('v_fmac_f32 v30, v%d, v%d' % (XRES + q, XRES + q))
        allred_rows('v_add_f32', 30, 31)
        settag(31, 0)
        tag([30], 31)
        E('s_add_u32 s%d, s%d, %d' % (sT2, sSTb, 8192 * k))
        E('s_mov_b64 exec, 15')
        lstore(['buffer_store_dword v30, v%d, %s, s%d offen offset:16' % (bSTw, sr(sWS, 4), sT2)])
        E('s_mov_b64 exec, -1')
        E(skip + ':')

    def b_stats(k, sigma):
        skip = E.label('Lk')
        E('s_cmp_lg_u32 s%d, 1\ns_cbranch_scc1 %s' % (sW, skip))
        E('s_add_u32 s%d, s%d, %d' % (sT2, sSTb, 8192 * k))
        settag(28, 0)
        E('v_lshrrev_b32 v29, 2, v1\nv_lshlrev_b32 v29, 5, v29\nv_lshl_add_u32 v29, v14, 2, v29')

        offs = (16, 528, 0, 512) if k == 2 else (16, 528)

        def loads():
            for n, off in enumerate(offs):
                E('buffer_load_dword v%d, v29, %s, s%d offen offset:%d %s' % (24 + n, sr(sWS, 4), sT2, off, lpol))
        poll(loads, lambda: check(list(range(24, 24 + len(offs))), 28, bAcc), 'st')
        E('v_add_f32 v24, v24, v25')
        allred_dpp('v_add_f32', 24); allred_rows('v_add_f32', 24, 25)
        if k == 2:
            E('v_add_f32 v25, v26, v27')
            allred_dpp('v_add_f32', 25); allred_rows('v_add_f32', 25, 26)
        E('v_mov_b32 v27, 0x%x\nv_mov_b32 v26, 0x%x\nv_fma_f32 v24, v24, v27, v26' % (f32(1 / 512.), f32(1e-5)))
        if sigma:
            E('v_rsq_f32 v24, v24\nv_mul_f32 v24, 0x%x, v24\nv_min_u32 v24, -2, v24\nv_readlane_b32 s%d, v24, s%d' % (f32(SCALE), sT0, sB))
            E('v_mov_b32 v24, s%d\nv_mov_b32 v25, %d\nds_write_b32 v25, v24' % (sT0, LDS_SIG))
        else:
            E('v_rcp_f32 v24, v24\nv_lshlrev_b32 v26, 3, v14\nv_add_u32 v26, %d, v26\nds_write_b64 v26, v[24:25]' % LDS_RS)
        E('s_waitcnt lgkmcnt(0)')
        E(skip + ':')

    def ffn(layer):
        settag(bTg, layer); settag(bT2, 2 + 4 * layer)
        E('s_barrier')
        if stop == 'XA%d' % layer:
            return True
        xr(2 * layer)
        stamp('B_xr%d' % (2 * layer + 1))
        gemv16(WG, ACT, DA)
        tag(range(DA, DA + 8), bT2)
        notw3 = E.label('Lw'); join = E.label('Lj')
        ps = push_stores(DA)
        lstore([ps[0], ps[1].replace('s%d offen' % sR4push, 's%d offen' % sG4)])
        E('s_cmp_lg_u32 s%d, 3\ns_cbranch_scc1 %s' % (sW, notw3))
        stamp('B_rg%d' % layer)
        keep_x()
        E('s_cmp_ge_u32 s%d, 28\ns_cbranch_scc1 %s' % (sJ, join))
        settag(bTg, 3 + 4 * layer)

        poll(rg_loads, lambda: check([16 + 4 * i for i in range(8)], bT2, bAcc), 'rg')
        stamp('B_gg%d' % layer)
        rg_sum()
        E('v_permlane32_swap_b32 v16, v17\nv_permlane32_swap_b32 v18, v19')
        E('v_max_f32 v16, 0, v16\nv_max_f32 v18, 0, v18\nv_mul_f32 v16, v16, v17\nv_mul_f32 v18, v18, v19')
        E('v_cvt_pk_bf16_f32 v20, v16, v18')
        c0 = '0'
        if layer == 0:
            E('v_mul_f32_e64 v24, v16, -v100\nv_mov_b32 v21, v20\nv_fma_f32 v24, v18, -v123, v24\nv_permlane32_swap_b32 v20, v21')
            allred_rows('v_add_f32', 24, 25)
            E('v_mov_b32 v25, v24\nv_mov_b32 v26, v24\nv_mov_b32 v27, v24')
            c0 = 'v[24:27]'
        else:
            E('v_mov_b32 v21, v20\nv_permlane32_swap_b32 v20, v21')
        for q in range(2):
            for t in range(8):
                E('v_mfma_f32_4x4x4_16b_bf16 %s, %s, v[20:21], %s blgp:%d' % (vr(DA + 4 * t, 4), vr(WD + 4 * t + 2 * q, 2), c0 if q == 0 else vr(DA + 4 * t, 4), 4 + q))
        if layer == 0:
            E('v_mov_b32 v%d, v24' % bMu)
        tag(range(DA, DA + 32), bTg)
        lstore(['buffer_store_dwordx4 %s, v%d, %s, s%d offen offset:%d' % (vr(DA + 4 * t, 4), bRDs, sr(sWS, 4), sR0 if t < 4 else sR16push, 1024 * (t & 3)) for t in range(8)])
        stamp('B_rd%d' % layer)
        E('s_branch %s\n%s:' % (join, notw3))
        publish_stats(2 * layer)
        b_stats(2 * layer, False)
        E(join + ':')
        E('s_barrier')
        if layer == 0:
            E('v_lshlrev_b32 v9, 3, v14\nv_add_u32 v9, %d, v9\nds_read_b32 v10, v9\ns_waitcnt lgkmcnt(0)\nv_fma_f32 v%d, -v%d, v10, v%d' % (LDS_RS, bMacc, bMu, bMacc))
        return False

    done = oproj(0) or ffn(0)
    if not done:
        settag(bTg, 0); settag(bT2, 4)
        E('v_mov_b32 v24, -1\nv_mov_b32 v25, %d\nds_write_b32 v25, v24\ns_waitcnt lgkmcnt(0)' % LDS_SIG)
        E('s_barrier')
        if stop != 'XB0':
            xr(1)
            stamp('B_xr2')
            gemv16(WQ, ACT, DA)
            tag(range(DA, DA + 8), bT2)
            lstore(push_stores(DA))
            publish_stats(1)
            E('s_barrier')
            b_stats(1, True)
            if stop != 'QS1':
                if prew in (7, 8):
                    E('s_sleep %d' % pdel)
                    prewrite((2, 3))
                E('s_barrier')
                if not (oproj(1) or ffn(1)):
                    settag(bTg, 1)
                    for k in range(4):
                        E('v_add_f32 v%d, v%d, v%d' % (XRES + k, XRES + k, bMean))
                    E('s_barrier')
                    E('s_and_b32 s%d, s%d, 7\ns_cmp_lg_u32 s%d, s%d\ns_cbranch_scc1 L_exit' % (sT0, sJ, sT0, sX))
                    E('s_cmp_lg_u32 s%d, 0\ns_cbranch_scc1 L_exit' % sW)
                    xr(3)
                    E('s_mov_b64 exec, %s' % sr(sMN4, 2))
                    E('buffer_store_dwordx2 %s, v%d, %s, 0 offen' % (vr(ACT, 2), bOut, sr(sOUT, 4)))
                    E('s_mov_b64 exec, -1')
                    stamp('B_out')
                    E('s_cmp_lg_u32 s2, 0\ns_cbranch_scc1 L_exit')
                    E('s_add_u32 s%d, s%d, 16\nv_mov_b32 v16, s%d\nv_mov_b32 v17, 0\ns_mov_b64 exec, 1' % (sT0, sE, sT0))
                    E('buffer_store_dword v16, v17, %s, 0 offen\ns_mov_b64 exec, -1' % sr(sWS, 4))
    E('s_branch L_exit')

    for s in stubs:
        E(s)
    E('L_fail:')
    if stamps:
        E('s_mov_b64 exec, -1\nv_writelane_b32 v%d, -1, 63' % vStamp)
    E('L_exit:')
    if calib:
        E('s_add_u32 s3, s3, 6000\nL_cal:\ns_sleep 2\ns_memrealtime s[96:97]\ns_waitcnt lgkmcnt(0)\ns_sub_u32 s4, s96, s14\ns_cmp_lt_u32 s4, s3\ns_cbranch_scc1 L_cal')
    if stamps and light:
        E('s_mov_b64 exec, -1\ns_waitcnt lgkmcnt(0)\nv_writelane_b32 v%d, s14, 0\ns_cmp_ge_u32 s%d, 4\ns_cbranch_scc1 L_lb' % (vStamp, sWave))
        for idx, p in lightuse['A']:
            E('v_writelane_b32 v%d, s%d, %d' % (vStamp, p, idx))
        E('s_branch L_lj\nL_lb:')
        for idx, p in lightuse['B']:
            E('v_writelane_b32 v%d, s%d, %d' % (vStamp, p, idx))
        E('L_lj:')
    if stamps:
        E('s_mov_b64 exec, -1')
        E('s_lshl_b32 s%d, s2, 3\ns_add_u32 s%d, s%d, s%d\ns_lshl_b32 s%d, s%d, 8' % (sT0, sT0, sT0, sWave, sT0, sT0))
        E('s_add_u32 s4, s26, s%d\ns_addc_u32 s5, s27, 0\ns_add_u32 s4, s4, 0x%x\ns_addc_u32 s5, s5, 0' % (sT0, STAMP))
        E('v_lshlrev_b32 v16, 2, v1\nglobal_store_dword v16, v%d, s[4:5]' % vStamp)
        if dbgst:
            E('v_readlane_b32 s4, v%d, 0\nv_cmp_ne_u32 vcc, 0, v%d\nv_subrev_u32 v17, s4, v%d\nv_cndmask_b32 v17, 0, v17, vcc' % (vStamp, vStamp, vStamp))
            E('s_mov_b32 s8, s24\ns_mov_b32 s9, s25\ns_mov_b32 s10, 256\ns_mov_b32 s11, 0x20000\ns_mov_b64 exec, 0xfcfc')
            E('buffer_atomic_umax v17, v16, s[8:11], 0 offen')
    E('L_end:')
    E('s_endpgm')
    E('L_codeend:')

    body = E.finish()
    ref = open('cdna_kernels/%s.s.ref' % KNAME).read().split('\n')
    hdr = [l for l in ref if l.startswith(';') and '@launch' not in l][:16]
    txt = '\n'.join(hdr) + '\n; @launch grid=(256,1,1) block=(512,1,1) lds=%d\n' % LDS_TOTAL
    txt += '.amdgcn_target "amdgcn-amd-amdhsa--gfx950"\n.text\n.globl %s_kernel\n.p2align 8\n.type %s_kernel,@function\n%s_kernel:\n' % (KNAME, KNAME, KNAME)
    txt += body
    txt += '''.section .rodata,"a"
.p2align 6
.amdhsa_kernel %s_kernel
  .amdhsa_next_free_vgpr 256
  .amdhsa_next_free_sgpr 102
  .amdhsa_accum_offset 256
  .amdhsa_group_segment_fixed_size 0
  .amdhsa_kernarg_size 96
  .amdhsa_user_sgpr_count 2
  .amdhsa_user_sgpr_kernarg_segment_ptr 1
  .amdhsa_system_sgpr_workgroup_id_x 1
.end_amdhsa_kernel
''' % KNAME
    stamp_names['_cnts'] = cnames
    return txt, stamp_names


if __name__ == '__main__':
    import argparse, json
    ap = argparse.ArgumentParser()
    ap.add_argument('-o', default='cdna_kernels/%s.s' % KNAME)
    ap.add_argument('--stop', default=None)
    ap.add_argument('--stamps', action='store_true')
    ap.add_argument('--opt', action='append', default=[])
    a = ap.parse_args()
    kw = {}
    for o in a.opt:
        k, v = o.split('=')
        try:
            v = int(v)
        except ValueError:
            pass
        kw[k] = v
    if 'light' in kw:
        kw['light'] = kw['light'].split(',')
    if 'dbgst' in kw:
        kw['dbgst'] = kw['dbgst'].split(',')
    txt, names = build(stop=a.stop, stamps=a.stamps, **kw)
    open(a.o, 'w').write(txt)
    if a.stamps:
        json.dump(names, open(a.o + '.json', 'w'))
    print('wrote', a.o, len(txt), 'bytes', txt.count('\n'), 'lines')
```

```python
import sys, struct, os
sys.path.insert(0, os.path.dirname(os.path.abspath(__file__)))
from emit import Emitter

KNAME = 'interleave_layers__sliding_block_cached__glu_gated_reglu__decode'

QS = 0x10000
ST = 0x20000
CM = 0x28000
LS = 0x30000
Q0A = 0x40000
GW = 0x38000
OS = 0x80000
OSC = 2560

RB = 0x140000
RU = 8448
RX = 32 * RU
XA = 0x400000
WS_USED = XA + 0x400000
STAMP = 0x10000000

S0 = 131072
S1 = S0 + 16384
LDS_WD = S1
LDS_PX = S1 + 8192
LDS_Q = S1 + 13312
LDS_ML = S1 + 14336
LDS_HS = S1 + 12288 + 64
LDS_QF = LDS_HS + 128
LDS_AI = LDS_QF + 4
LDS_GC = LDS_QF + 8
LDS_CNT = LDS_QF + 12
LDS_SIG = LDS_HS + 256
LDS_RS = LDS_SIG + 16
LDS_RM = LDS_HS + 384
LDS_CF = LDS_RM
LDS_TOTAL = 163840


def f32(x):
    return struct.unpack('<I', struct.pack('<f', x))[0]


LOG2E = 1.4426950408889634
SCALE = (128 ** -0.5) * LOG2E


def vr(a, n=1):
    return 'v%d' % a if n == 1 else 'v[%d:%d]' % (a, a + n - 1)


def sr(a, n=1):
    return 's%d' % a if n == 1 else 's[%d:%d]' % (a, a + n - 1)


DPPM = 'row_mask:0xf bank_mask:0xf'


def build(stop=None, stamps=False, light=None, xack=0, cntw=1, wdwhen=0, wb=0, pre34=1, pre2=4, xnext='', fullx=0, prd='', pdel=36, pridx=0, prew=0, xarr=10123, dual=0, xsel=0, xst='sc1', win=6, xfirst=1, x0pol='nt', vwin=4, aitile=7, lateB=0, nocm=0, touchR=0, diag='', cnts=0, touch=1, tpol='nt', probe=0, dl='', dbgst=None, calib=None, nob=0, tlb=0, nox=0, noclr=0, nopf=0, vend=0, xa=7, xc=7, apol='nt', lpol='nt', xpol='sc1', epf=1, kvrot=0, ncode=1, gwdelay=0, nokread=0, late=True, rot=37, xdelay=0, force_slow=False, kvpol='nt', wpol='nt', afirst=12, agap=4, bfirst=12, bgap=14, bD=3, cfirst=90):
    E = Emitter()
    cidx = [0]; cnames = []; diag_done = []
    diag = diag.split(':') if diag else None
    DL = {'ro0': (0, 0), 'ro1': (0, 0), 'rd': (0, 0), 'rq': (0, 0), 'q': (0, 0), 'os0': (0, 0), 'os1': (0, 0), 'x': (32, 0), 'rg': (0, 0), 'st': (8, 1), 'cs': (12, 1), 'cm': (16, 3)}
    for kv in (dl.split(',') if dl else []):
        k, a_, b_ = kv.split(':')
        DL[k] = (int(a_), int(b_))
    stubs = []

    sWS = 28; sA = 32; sBv = 36; sC = 40; sD = 44; sXs = 48; sOUT = 52; sDBG = 56
    sX, sJ, sB, sW, sE, sMode = 60, 61, 62, 63, 64, 65
    sT0, sT1, sT2, sT3, sCnt, sSig = 66, 67, 68, 69, 70, 71
    sR0, sR16push, sR16pull, sOSb, sLSb, sQ0, sQ1, sXAo, sXBo = 72, 73, 74, 75, 76, 77, 78, 79, 80
    sSTb, sMsk, sWave = 81, 82, 83
    sM1, sM2, sM3, sMN4 = 84, 86, 88, 90
    sMa, sMb = 92, 94
    sTm = 96
    sXA4, sXB4 = 98, 99
    sXn = [sXAo, sXBo, sXA4, sXB4]
    xarr = [int(c) for c in str(xarr)[1:]]
    vL = 1
    vStamp = 15

    lightA = [4, 6, 8, 10, 12, 16, 18, 20, 22, 24, 40, 42, 50, 52, 54, 56, 58, 84, 86, 88]
    lightB = [4, 6, 8, 10, 16, 18, 20, 22, 24, 36, 38, 40, 42, 48, 50, 56, 58]
    lightuse = {'A': [], 'B': []}
    stamp_names = {}

    def stamp(name):
        if calib and name == 'start':
            E('s_memrealtime s[14:15]\ns_mov_b32 s3, 0')
        if calib and name == calib:
            E('s_memrealtime s[96:97]\ns_waitcnt lgkmcnt(0)\ns_sub_u32 s3, s96, s14')
        if not stamps:
            return
        if light:
            pool = lightA if name[0] == 'A' else lightB
            if name == 'start':
                E('s_memrealtime s[14:15]')
                stamp_names[name] = 0
            elif name in light and pool:
                if name in stamp_names:
                    p = dict(lightuse[name[0]])[stamp_names[name]]
                else:
                    p = pool.pop(0)
                    idx = stamp_names.setdefault(name, len(stamp_names))
                    lightuse[name[0]].append((idx, p))
                E('s_memrealtime s[%d:%d]' % (p, p + 1))
            return
        if dbgst:
            if name not in dbgst and name != 'start':
                return
            idx = 0 if name == 'start' else [2, 3, 4, 5, 6, 7, 10, 11, 12, 13, 14, 15][dbgst.index(name)]
            stamp_names[name] = idx
        else:
            idx = stamp_names.setdefault(name, len(stamp_names))
        E('s_memrealtime s[96:97]\ns_waitcnt lgkmcnt(0)\nv_writelane_b32 v%d, s96, %d' % (vStamp, idx))

    def set_mask(s, val):
        E('s_mov_b32 %s, 0x%x\ns_mov_b32 %s, 0x%x' % (sr(s), val & 0xffffffff, sr(s + 1), val >> 32))

    def srd(d, lo, size):
        E('s_mov_b32 s%d, s%d\ns_mov_b32 s%d, s%d\ns_mov_b32 s%d, %d\ns_mov_b32 s%d, 0x20000' % (d, lo, d + 1, lo + 1, d + 2, size, d + 3))

    def settag(v, u):
        E('s_add_u32 s%d, s%d, %d\ns_and_b32 s%d, s%d, 0x7f\nv_mov_b32 v%d, s%d' % (sT0, sE, 1 + u, sT0, sT0, v, sT0))

    def tag(regs, vT):
        for r in regs:
            E('v_and_or_b32 v%d, v%d, s%d, v%d' % (r, r, sMsk, vT))

    def check(regs, vT, acc):
        E('v_xor_b32 v%d, v%d, v%d' % (acc, regs[0], vT))
        for r in regs[1:]:
            E('v_bitop3_b32 v%d, v%d, v%d, v%d bitop3:0xf6' % (acc, acc, r, vT))
        E('v_and_b32 v%d, 0xff, v%d\nv_cmp_ne_u32 vcc, 0, v%d' % (acc, acc, acc))

    def check_sent(regs, acc):
        E('v_max3_u32 v%d, v%d, v%d, v%d' % (acc, regs[0], regs[1], regs[2]))
        rest = regs[3:]
        while len(rest) >= 2:
            E('v_max3_u32 v%d, v%d, v%d, v%d' % (acc, acc, rest[0], rest[1]))
            rest = rest[2:]
        if rest:
            E('v_max_u32 v%d, v%d, v%d' % (acc, acc, rest[0]))
        E('v_cmp_eq_u32 vcc, -1, v%d' % acc)

    def delay(n):
        if n >= 4:
            E('s_sleep %d' % (n // 4))
        if n % 4:
            E('s_nop %d' % (4 * (n % 4) - 1))

    def poll(loads, chk, key=None):
        top = E.label('Lp')
        E('s_mov_b32 s%d, 0' % sCnt)
        first, again = DL.get(key, (0, 0))
        delay(first)
        if diag and key == diag[0] and not diag_done:
            diag_done.append(1)
            r = diag[1]
            stamp(r + '_d0')
            E('s_waitcnt vmcnt(0)')
            stamp(r + '_d1')
            loads()
            E('s_waitcnt vmcnt(0)')
            stamp(r + '_d2')
            loads()
            E('s_waitcnt vmcnt(0)')
            stamp(r + '_d3')
            loads()
            E('s_waitcnt vmcnt(0)')
            stamp(r + '_d4')
        if again:
            go = E.label('Lg')
            E('s_branch %s\n%s:\ns_sleep %d\n%s:' % (go, top, again, go))
        else:
            E(top + ':')
        loads()
        E('s_add_u32 s%d, s%d, 1\ns_cmp_gt_u32 s%d, 0x2000\ns_cbranch_scc1 L_fail' % (sCnt, sCnt, sCnt))
        E('s_waitcnt vmcnt(0)')
        chk()
        E('s_cbranch_vccnz %s' % top)
        if stamps and cnts:
            cidx[0] += 1
            cnames.append(key)
            E('v_writelane_b32 v%d, s%d, %d' % (vStamp, sCnt, 35 + cidx[0]))

    def poll_pipe(nload, nreg, base, loads, chk, dst, stride, D, first, gap):
        top = E.label('Lq'); done = E.label('Ld')
        oks = [E.label('Lo') for _ in range(D)]
        E('s_mov_b32 s%d, 0' % sCnt)
        if first:
            E('s_sleep %d' % first)
        for d in range(D - 1):
            loads(base + d * stride)
            E('s_sleep %d' % gap)
        E(top + ':')
        for d in range(D):
            loads(base + ((d + D - 1) % D) * stride)
            E('s_waitcnt vmcnt(%d)' % ((D - 1) * nload))
            chk(base + d * stride)
            E('s_cbranch_vccz %s' % oks[d])
        E('s_add_u32 s%d, s%d, 1\ns_cmp_lt_u32 s%d, 0x1000\ns_cbranch_scc1 %s\ns_branch L_fail' % (sCnt, sCnt, sCnt, top))
        for d in range(D):
            E(oks[d] + ':')
            for k in range(nreg):
                E('v_mov_b32 v%d, v%d' % (dst + k, base + d * stride + k))
            if d != D - 1:
                E('s_branch %s' % done)
        E(done + ':')

    def lstore(stores, always_sc1=False):
        if always_sc1:
            for s in stores:
                E(s + ' sc1')
            return
        slow = E.label('Ls'); back = E.label('Lb')
        E('s_cmp_eq_u32 s%d, 0\ns_cbranch_scc1 %s' % (sMode, slow))
        for s in stores:
            E(s)
        E(back + ':')
        stubs.append(slow + ':\n' + '\n'.join(s + (' sc1' if s.startswith('buffer') else '') for s in stores) + '\ns_nop 1\ns_branch ' + back)

    def lds_wait(addr, n, va, vd, nap=0):
        top = E.label('Lh')
        E('v_mov_b32 v%d, %d\ns_mov_b32 s%d, 0\n%s:' % (va, addr, sCnt, top))
        if nap:
            E('s_sleep %d' % nap)
        E('ds_read_b32 v%d, v%d\ns_add_u32 s%d, s%d, 1\ns_cmp_gt_u32 s%d, 0x4000\ns_cbranch_scc1 L_fail' % (vd, va, sCnt, sCnt, sCnt))
        E('s_waitcnt lgkmcnt(0)\nv_cmp_gt_u32 vcc, %d, v%d\ns_cbranch_vccnz %s' % (n, vd, top))

    def allred_dpp(op, r):
        E('%s_dpp v%d, v%d, v%d row_ror:4 %s' % (op, r, r, r, DPPM))
        E('%s_dpp v%d, v%d, v%d row_ror:8 %s' % (op, r, r, r, DPPM))

    def allred_rows(op, r, t):
        E('v_mov_b32 v%d, v%d\nv_permlane16_swap_b32 v%d, v%d\n%s v%d, v%d, v%d' % (t, r, r, t, op, r, r, t))
        E('v_mov_b32 v%d, v%d\nv_permlane32_swap_b32 v%d, v%d\n%s v%d, v%d, v%d' % (t, r, r, t, op, r, r, t))

    def quad_reduce(a, b):
        for k in (0, 2):
            E('v_pk_add_f32 %s, %s, %s' % (vr(a + k, 2), vr(a + k, 2), vr(b + k, 2)))
        E('v_permlane32_swap_b32 v%d, v%d\nv_permlane32_swap_b32 v%d, v%d' % (a, a + 2, a + 1, a + 3))
        E('v_pk_add_f32 %s, %s, %s' % (vr(a, 2), vr(a, 2), vr(a + 2, 2)))
        E('v_permlane16_swap_b32 v%d, v%d\nv_add_f32 v%d, v%d, v%d' % (a, a + 1, a, a, a + 1))
        allred_dpp('v_add_f32', a)

    def common_consts():
        srd(sWS, 26, WS_USED)
        E('s_mul_i32 s%d, s%d, %d\ns_add_u32 s%d, s%d, %d' % (sR0, sX, RX, sR0, sR0, RB))
        E('s_add_u32 s%d, s%d, 4096\ns_add_u32 s%d, s%d, %d' % (sR16push, sR0, sR16pull, sR0, 16 * RU))
        E('s_mul_i32 s%d, s%d, %d\ns_add_u32 s%d, s%d, %d' % (sOSb, sX, 32 * OSC, sOSb, sOSb, OS))
        E('s_lshl_b32 s%d, s%d, 9\ns_add_u32 s%d, s%d, %d' % (sLSb, sX, sLSb, sLSb, LS))
        E('s_lshl_b32 s%d, s%d, 12\ns_add_u32 s%d, s%d, %d\ns_add_u32 s%d, s%d, 32768' % (sQ0, sX, sQ0, sQ0, QS, sQ1, sQ0))
        E('s_lshl_b32 s%d, s%d, 10\ns_add_u32 s%d, s%d, %d' % (sSTb, sX, sSTb, sSTb, ST))
        for n in range(4):
            E('s_mov_b32 s%d, %d' % (sXn[n], XA + 0x100000 * xarr[n]))
        E('s_mov_b32 s%d, 0xffffff00' % sMsk)
        set_mask(sMN4, 0x000F000F000F000F)
        set_mask(sMa, 0x0000000F0000000F)

    def finish_wave():
        E('s_branch L_exit')

    def maybe_stop(name):
        if stop == name:
            finish_wave()
            return True
        return False

    E('s_cmp_ge_u32 s2, 256\ns_cbranch_scc1 L_end')
    E('s_load_dwordx8 s[4:11], s[0:1], 0\ns_load_dwordx2 s[12:13], s[0:1], 32')
    E('s_load_dwordx8 s[16:23], s[0:1], 48\ns_load_dwordx4 s[24:27], s[0:1], 80')
    E('v_lshrrev_b32 v2, 6, v0\nv_and_b32 v1, 63, v0\nv_readfirstlane_b32 s%d, v2' % sWave)
    if epf:
        E('s_getpc_b64 s[100:101]\nL_pc0:\ns_lshl_b32 s%d, s%d, 10\ns_cmp_lt_u32 s%d, 4\ns_cselect_b32 s%d, 64, L_B-L_pc0-4096' % (sT0, sWave, sWave, sT1))
        E('s_add_u32 s%d, s%d, s%d\nv_lshl_add_u32 v2, v1, 4, s%d\nglobal_load_dwordx4 v[124:127], v2, s[100:101]' % (sT0, sT0, sT1, sT0))
    E('s_and_b32 s%d, s2, 7\ns_lshr_b32 s%d, s2, 3\ns_lshr_b32 s%d, s2, 6' % (sX, sJ, sB))
    E('s_and_b32 s%d, s%d, 3' % (sW, sWave))
    if stamps:
        E('v_mov_b32 v%d, 0' % vStamp)
    stamp('start')
    E('v_lshrrev_b32 v12, 4, v1\nv_and_b32 v13, 15, v1')
    E('s_cmp_lt_u32 s%d, 4\ns_cbranch_scc1 L_A' % sWave)
    bL16 = 122
    E('s_setprio 3')
    E('v_lshlrev_b32 v3, 4, v13\nv_lshl_add_u32 v2, v12, 13, v3\nv_lshlrev_b32 v%d, 4, v1' % bL16)
    E('v_lshrrev_b32 v5, 3, v1\nv_and_b32 v6, 7, v1\nv_mul_u32_u24 v5, 3584, v5\nv_lshl_add_u32 v5, v6, 4, v5')
    E('v_and_b32 v14, 3, v1\nv_lshlrev_b32 v8, 3, v12\nv_lshl_add_u32 v8, v14, 10, v8\nv_lshl_add_u32 v8, s%d, 5, v8' % sJ)
    E('s_lshl_b32 s%d, s%d, 12\ns_lshl_b32 s%d, s%d, 10' % (sT3, sW, sT2, sW))
    E('s_lshl_b32 s%d, s%d, 7\ns_add_u32 s%d, s%d, s%d\ns_lshl_b32 s%d, s%d, 2\ns_add_u32 s%d, s%d, s%d\ns_lshl_b32 s%d, s%d, 8' % (sT0, sJ, sT0, sT0, sX, sT0, sT0, sT0, sT0, sW, sT0, sT0))
    E('v_lshlrev_b32 v4, 2, v13\nv_lshl_add_u32 v4, v12, 7, v4\nv_add_u32 v4, %d, v4\nv_mov_b32 v7, 0\nds_write_b32 v4, v7' % LDS_HS)
    E('s_add_u32 m0, s%d, %d' % (sT3, S0))
    E('s_mov_b32 s%d, 4096\ns_mov_b32 s%d, 0x20000\ns_mov_b32 s%d, 4194304\ns_mov_b32 s%d, 0x20000' % (sXs + 2, sXs + 3, sA + 2, sA + 3))
    E('s_waitcnt lgkmcnt(0)')
    E('s_mov_b64 %s, s[10:11]\ns_mov_b64 %s, s[4:5]' % (sr(sA, 2), sr(sXs, 2)))
    E('buffer_load_dwordx4 v[16:19], v%d, %s, s%d offen %s' % (bL16, sr(sXs, 4), sT2, x0pol))
    E('buffer_load_dwordx2 v[32:33], v8, %s, 0 offen %s' % (sr(sXs, 4), x0pol))
    for i in range(4):
        if i:
            E('s_add_u32 m0, m0, 1024\ns_add_u32 s%d, s%d, 32768' % (sT0, sT0))
        E('buffer_load_dwordx4 v2, %s, s%d offen %s lds' % (sr(sA, 4), sT0, wpol))
    E('s_load_dword s%d, s[26:27], 0' % sE)
    E('s_barrier')
    E('s_branch L_B')

    E('L_A:')
    KR = 128
    vKo = [2, 3, 4, 5]; vVo = [6, 7]; vKr = [8, 9, 10, 11]
    E('v_xor_b32 v14, v13, v12\nv_lshlrev_b32 v14, 4, v14\nv_lshl_add_u32 v2, v12, 8, v14')
    for k in range(1, 4):
        E('v_xor_b32 v%d, %d, v2' % (vKo[k], 64 * k))
    E('v_lshlrev_b32 v14, 1, v12\nv_xor_b32 v14, v13, v14\nv_lshlrev_b32 v14, 4, v14\nv_lshl_add_u32 v6, v12, 8, v14')
    E('v_xor_b32 v7, 128, v6')
    if kvrot:
        E('s_add_u32 s%d, s%d, %d\ns_and_b32 s%d, s%d, 7' % (sT1, sX, kvrot, sT1, sT1))
        E('s_lshl_b32 s%d, s%d, 3\ns_add_u32 s%d, s%d, s%d\ns_lshl_b32 s%d, s%d, 22' % (sT0, sB, sT0, sT0, sT1, sT0, sT0))
    else:
        E('s_lshl_b32 s%d, s%d, 3\ns_add_u32 s%d, s%d, s%d\ns_lshl_b32 s%d, s%d, 22' % (sT0, sB, sT0, sT0, sX, sT0, sT0))
    E('s_and_b32 s%d, s%d, 7\ns_lshl_b32 s%d, s%d, 17\ns_add_u32 s%d, s%d, s%d\ns_add_u32 s%d, s%d, %d' % (sT1, sJ, sT1, sT1, sT0, sT0, sT1, sT0, sT0, 12288 * 256))
    sOff, sOf0, sLb = 44, 45, 46
    E('s_mul_i32 s%d, s2, %d\ns_add_u32 s%d, s%d, s%d\ns_and_b32 s%d, s%d, 127\ns_lshl_b32 s%d, s%d, 10' % (sOf0, rot, sOf0, sOf0, sW, sOf0, sOf0, sOf0, sOf0))
    E('s_lshl_b32 s%d, s%d, 15' % (sLb, sW))
    E('s_waitcnt lgkmcnt(0)')
    E('s_add_u32 s%d, s6, s%d\ns_addc_u32 s%d, s7, 0\ns_mov_b32 s%d, 131072\ns_mov_b32 s%d, 0x20000' % (sA, sT0, sA + 1, sA + 2, sA + 3))
    E('s_add_u32 s%d, s8, s%d\ns_addc_u32 s%d, s9, 0\ns_mov_b32 s%d, 131072\ns_mov_b32 s%d, 0x20000' % (sBv, sT0, sBv + 1, sBv + 2, sBv + 3))
    E('s_load_dword s%d, s[26:27], 0' % sE)
    if tlb:
        E('s_mov_b64 exec, 1\nbuffer_load_dword v16, v2, %s, 0 offen nt\ns_mov_b64 exec, -1' % sr(sBv, 4))

    def kvload(i, srdn, voff, windowed=True):
        E('s_add_u32 m0, s%d, %d' % (sLb, i * 1024))
        if i == 0:
            E('s_mov_b32 s%d, s%d' % (sOff, sOf0))
        else:
            E('s_add_u32 s%d, s%d, 4096\ns_and_b32 s%d, s%d, 0x1ffff' % (sOff, sOff, sOff, sOff))
        if win and windowed and (i >= win or srdn == sBv):
            E('s_waitcnt vmcnt(%d)' % (win - 1))
        E('buffer_load_dwordx4 v%d, %s, s%d offen %s lds' % (voff, sr(srdn, 4), sOff, kvpol))

    vVT = [112, 113, 114, 115]
    vPXw, vPXr, vMLa, vQf, vOSw, vLSw = 116, 117, 118, 119, 82, 83
    vRgPush, vRgPull, vXp, vQSw, vSTr, vXpF = 120, 121, 122, 123, 87, 2
    vTg, vAcc = 3, 4
    def reducer_addrs(vPush, vPull, vX, vXF, vQ, vS, t0):
        E('v_and_b32 v%d, 3, v1\nv_lshrrev_b32 v%d, 2, v1' % (t0, t0 + 1))
        E('s_lshl_b32 s%d, s%d, 6\nv_lshl_add_u32 v%d, v%d, 4, s%d' % (sT0, sW, t0 + 2, t0, sT0))
        E('s_mul_i32 s%d, s%d, %d\nv_lshl_add_u32 v%d, v%d, 8, v%d\nv_add_u32 v%d, s%d, v%d' % (sT1, sJ, RU, vPush, t0 + 1, t0 + 2, vPush, sT1, vPush))
        if vPull is not None:
            E('v_mul_u32_u24 v%d, %d, v%d\nv_add_u32 v%d, v%d, v%d\ns_lshl_b32 s%d, s%d, 8\nv_add_u32 v%d, s%d, v%d' % (vPull, RU, t0 + 1, vPull, vPull, t0 + 2, sT1, sJ, vPull, sT1, vPull))
        if vX is not None:
            if fullx:
                E('s_lshl_b32 s%d, s%d, 15\ns_lshl_b32 s%d, s%d, 9\ns_add_u32 s%d, s%d, s%d\ns_lshl_b32 s%d, s%d, 7\ns_add_u32 s%d, s%d, s%d' % (sT0, sJ, sT1, sX, sT0, sT0, sT1, sT1, sW, sT0, sT0, sT1))
                E('v_and_b32 v%d, 7, v1\nv_lshlrev_b32 v%d, 4, v%d\nv_add_u32 v%d, s%d, v%d' % (t0 + 3, t0 + 3, t0 + 3, t0 + 3, sT0, t0 + 3))
                E('v_lshrrev_b32 v%d, 3, v1\nv_lshl_add_u32 v%d, v%d, 12, v%d' % (vX, vX, vX, t0 + 3))
                E('s_and_b32 s%d, s%d, 7\ns_lshl_b32 s%d, s%d, 12\nv_add_u32 v%d, s%d, v%d' % (sT0, sJ, sT0, sT0, vXF, sT0, t0 + 3))
            else:
                E('s_lshl_b32 s%d, s%d, 15\ns_lshl_b32 s%d, s%d, 8\ns_add_u32 s%d, s%d, s%d\nv_add_u32 v%d, s%d, v%d' % (sT0, sJ, sT1, sX, sT0, sT0, sT1, t0 + 3, sT0, t0 + 2))
                E('v_lshrrev_b32 v%d, 5, v1\nv_lshl_add_u32 v%d, v%d, 13, v%d' % (vX, t0 + 3, vX, t0 + 3))
                E('v_and_b32 v%d, 3, v%d\nv_lshl_add_u32 v%d, v%d, 11, v%d\nv_bfe_u32 v%d, v1, 4, 1\nv_lshl_add_u32 v%d, v%d, 14, v%d' % (vX, t0 + 1, vX, vX, t0 + 3, vXF, vX, vXF, vX))
                E('s_and_b32 s%d, s%d, 3\ns_lshl_b32 s%d, s%d, 11\ns_and_b32 s%d, s%d, 4\ns_lshl_b32 s%d, s%d, 12\ns_add_u32 s%d, s%d, s%d\nv_add_u32 v%d, s%d, v%d' % (sT0, sJ, sT0, sT0, sT1, sJ, sT1, sT1, sT0, sT0, sT1, vXF, sT0, t0 + 3))
        E('v_lshrrev_b32 v%d, 5, v1\nv_lshlrev_b32 v%d, 2, v%d\nv_lshl_add_u32 v%d, v%d, 10, v%d' % (t0 + 3, t0 + 3, t0 + 3, t0 + 3, t0, t0 + 3))
        E('s_and_b32 s%d, s%d, 7\ns_lshl_b32 s%d, s%d, 7\ns_lshl_b32 s%d, s%d, 4\ns_add_u32 s%d, s%d, s%d' % (sT0, sJ, sT0, sT0, sT1, sB, sT0, sT0, sT1))
        E('s_lshr_b32 s%d, s%d, 1\ns_lshl_b32 s%d, s%d, 6\ns_add_u32 s%d, s%d, s%d\ns_and_b32 s%d, s%d, 1\ns_lshl_b32 s%d, s%d, 3\ns_add_u32 s%d, s%d, s%d' % (sT1, sW, sT1, sT1, sT0, sT0, sT1, sT1, sW, sT1, sT1, sT0, sT0, sT1))
        E('v_add_u32 v%d, s%d, v%d' % (vQ, sT0, t0 + 3))
        if vS is not None:
            E('v_lshlrev_b32 v%d, 3, v%d\nv_add_u32 v%d, %d, v%d' % (vS, t0, vS, LDS_RS, vS))

    def a_setup():
        common_consts()
        E('v_lshrrev_b32 v16, 2, v1')
        E('v_and_b32 v17, 7, v16\nv_lshlrev_b32 v17, 1, v17')
        E('v_bfe_u32 v18, v1, 1, 1\ns_lshl_b32 s%d, s%d, 2\nv_add_u32 v18, s%d, v18' % (sT0, sW, sT0))
        E('v_xor_b32 v18, v18, v17\nv_lshlrev_b32 v18, 4, v18\nv_lshl_add_u32 v18, v16, 8, v18')
        E('v_and_b32 v19, 1, v1\nv_lshl_add_u32 v112, v19, 3, v18')
        E('v_xor_b32 v113, 32, v112\nv_add_u32 v114, 0x10000, v112\nv_add_u32 v115, 0x10000, v113')
        E('s_lshl_b32 s%d, s%d, 10\ns_add_u32 s%d, s%d, %d\nv_lshl_add_u32 v%d, v1, 4, s%d' % (sT0, sW, sT0, sT0, LDS_PX, vPXw, sT0))
        E('v_and_b32 v16, 3, v1\nv_lshl_add_u32 v17, v12, 4, v16\nv_lshlrev_b32 v17, 4, v17\nv_add_u32 v%d, %d, v17' % (vPXr, LDS_PX))
        E('v_lshlrev_b32 v17, 3, v1\nv_add_u32 v%d, %d, v17' % (vMLa, LDS_ML))
        E('v_lshlrev_b32 v17, 4, v16\nv_lshl_add_u32 v%d, v12, 6, v17' % vQf)
        E('v_mul_u32_u24 v17, %d, v16' % (8 * OSC))
        E('s_mul_i32 s%d, s%d, %d\ns_and_b32 s%d, s%d, 7\ns_mul_i32 s%d, s%d, 320\ns_add_u32 s%d, s%d, s%d\ns_lshl_b32 s%d, s%d, 4\ns_add_u32 s%d, s%d, s%d' % (sT0, sW, 2 * OSC, sT1, sJ, sT1, sT1, sT0, sT0, sT1, sT1, sB, sT0, sT0, sT1))
        E('v_add_u32 v17, s%d, v17\nv_lshl_add_u32 v%d, v12, 6, v17' % (sT0, vOSw))
        E('v_mul_u32_u24 v18, %d, v12\nv_add_u32 v%d, v17, v18' % (OSC, vLSw))

        reducer_addrs(vRgPush, vRgPull, vXp, 14, vQSw, vSTr, 16)

    for i in range(32):
        kvload(i, sA, vKo[i & 3])
        if i == pridx and prew in (6, 7):
            skip = E.label('Lk')
            E('s_cmp_ge_u32 s%d, %d\ns_cbranch_scc1 %s' % (sW, 3 if prew == 6 else 2, skip))
            srd(sWS, 26, WS_USED)
            E('s_lshl_b32 s%d, s%d, 15\ns_lshl_b32 s%d, s%d, 8\ns_add_u32 s%d, s%d, s%d\ns_lshl_b32 s%d, s%d, 20\ns_add_u32 s%d, s%d, s%d\ns_add_u32 s%d, s%d, %d' % (sT0, sJ, sT1, sX, sT0, sT0, sT1, sT1, sW, sT0, sT0, sT1, sT0, sT0, XA))
            E('v_lshlrev_b32 v16, 4, v13\nv_lshl_add_u32 v16, v12, 11, v16\ns_add_u32 s%d, s%d, 16384' % (sT1, sT0))
            E('buffer_load_dwordx4 v[20:23], v16, %s, s%d offen\nbuffer_load_dwordx4 v[20:23], v16, %s, s%d offen' % (sr(sWS, 4), sT0, sr(sWS, 4), sT1))
            E(skip + ':')
        if i == 3:
            E('s_barrier')
        if i == max(win, 4) - 1 + (8 if not win else 0):
            E('v_xor_b32 v14, v12, v13\nv_lshlrev_b32 v14, 4, v14\nv_lshl_add_u32 v8, v13, 8, v14\nv_add_u32 v8, s%d, v8' % sLb)
            for c in range(1, 4):
                E('v_xor_b32 v%d, %d, v8' % (vKr[c], 64 * c))
            a_setup()
    QF = 16; SA = 32; PA = 32; PB = 36; PP = 72; TM = 64; CF = 88; vLSE = 124; vM = 80; vLp = 81
    TORD = [0, 2, 4, 6, 1, 3, 5, 7]

    def vfrag_reads(dst, wp, t, e):
        a = vVT[e + 2 * (wp >> 1)]
        off = (wp & 1) * 32768 + t * 8192
        return ['ds_read_b64_tr_b16 %s, v%d offset:%d' % (vr(dst, 2), a, off),
                'ds_read_b64_tr_b16 %s, v%d offset:%d' % (vr(dst + 2, 2), a, off + 4096)]

    FR = [(wp, t, e) for wp in range(4) for t in range(4) for e in range(2)]
    fragreg = {f: KR + 16 * TORD[n // 4] + 4 * (n % 4) for n, f in enumerate(FR)}

    def scores_softmax(phase):
        pend = []
        if phase == 2:
            pend = ['v_mov_b32 v%d, %d' % (TM + 1, LDS_SIG), 'ds_read_b32 v%d, v%d' % (TM + 2, TM + 1),
                    'v_and_b32 v81, 3, v1', 'v_lshlrev_b32 v81, 4, v81', 'v_add_u32 v81, %d, v81' % LDS_CF,
                    'v_lshl_add_u32 v%d, s%d, 2, v81' % (TM + 6, sW)]
        for k, t in enumerate(TORD):
            if phase == 2 and k == 2:
                E('s_waitcnt lgkmcnt(8)\nv_readfirstlane_b32 s%d, v%d' % (sSig, TM + 2))
            for c in range(4):
                E('v_mfma_f32_16x16x32_bf16 %s, %s, %s, %s' % (vr(SA + 4 * t, 4), vr(KR + 16 * t + 4 * c, 4), vr(QF + 4 * c, 4), '0' if c == 0 else vr(SA + 4 * t, 4)))
                for _ in range(2):
                    if pend:
                        E(pend.pop(0))
            if phase == 2 and k < 5:
                for n in range(4 * k, 4 * k + 4):
                    pend += vfrag_reads(fragreg[FR[n]], *FR[n])
            if k == 4:
                pk = []
                for tt in range(1, 4):
                    for r in range(4):
                        pk.append('v_mov_b32_dpp v%d, v%d row_shr:%d row_mask:0xf bank_mask:0x%x' % (PA + r, SA + 8 * tt + r, 4 * tt, 1 << tt))
                pk.append('v_max3_f32 v%d, v%d, v%d, v%d' % (vM, PA, PA + 1, PA + 2))
                pk.append('v_max_f32 v%d, v%d, v%d' % (vM, vM, PA + 3))
                if phase == 2:
                    mix = []
                    while pk or pend:
                        if pend: mix.append(pend.pop(0))
                        if pk: mix.append(pk.pop(0))
                    pend = mix
                else:
                    pend = pk
        for tt in range(1, 3):
            for r in range(4):
                E('v_mov_b32_dpp v%d, v%d row_shr:%d row_mask:0xf bank_mask:0x%x' % (PB + r, SA + 4 + 8 * tt + r, 4 * tt, 1 << tt))
        while pend:
            E(pend.pop(0))
        for r in range(4):
            E('v_mov_b32_dpp v%d, v%d row_shr:12 row_mask:0xf bank_mask:0x8' % (PB + r, SA + 28 + r))
        E('v_max3_f32 v%d, v%d, v%d, v%d\nv_max3_f32 v%d, v%d, v%d, v%d' % (vM, vM, PB, PB + 1, vM, vM, PB + 2, PB + 3))
        allred_dpp('v_max_f32', vM)
        allred_rows('v_max_f32', vM, TM)
        if phase == 2:
            stub, back, top = E.label('Ls'), E.label('Lb'), E.label('Lh')
            E('ds_write_b32 v%d, v%d\ns_cmp_eq_u32 s%d, -1\ns_cbranch_scc1 %s\n%s:' % (TM + 6, vM, sSig, stub, back))
            stubs.append('%s:\ns_mov_b32 s%d, 0\n%s:\nds_read_b32 v%d, v%d\ns_add_u32 s%d, s%d, 1\ns_cmp_gt_u32 s%d, 0x8000\ns_cbranch_scc1 L_fail\n' % (stub, sCnt, top, TM + 2, TM + 1, sCnt, sCnt, sCnt) +
                         's_waitcnt lgkmcnt(0)\nv_readfirstlane_b32 s%d, v%d\ns_cmp_eq_u32 s%d, -1\ns_cbranch_scc1 %s\ns_nop 1\ns_branch %s' % (sSig, TM + 2, sSig, top, back))
        E('v_mul_f32_e64 v%d, s%d, -v%d' % (TM, sSig, vM))
        for r in range(8):
            E('v_fma_f32 v%d, v%d, s%d, v%d' % (PA + r, PA + r, sSig, TM))
        for r in range(8):
            E('v_exp_f32 v%d, v%d' % (PA + r, PA + r))
        for r in range(4):
            E('v_cvt_pk_bf16_f32 v%d, v%d, v%d' % (PP + r, PA + 2 * r, PA + 2 * r + 1))
        E('ds_write_b128 v%d, %s' % (vPXw, vr(PP, 4)))
        if phase == 2:
            return
        E('v_add_f32 v%d, v%d, v%d\nv_add_f32 v%d, v%d, v%d' % (TM, PA, PA + 1, TM + 1, PA + 2, PA + 3))
        E('v_add_f32 v%d, v%d, v%d\nv_add_f32 v%d, v%d, v%d' % (TM + 2, PA + 4, PA + 5, TM + 3, PA + 6, PA + 7))
        E('v_add_f32 v%d, v%d, v%d\nv_add_f32 v%d, v%d, v%d\nv_add_f32 v%d, v%d, v%d' % (TM, TM, TM + 1, TM + 2, TM + 2, TM + 3, TM + 5, TM, TM + 2))
        E('v_mov_b32 v%d, v%d' % (TM + 4, vM))
        E('s_lshl_b32 s%d, s%d, 9\nv_add_u32 v%d, s%d, v%d' % (sT0, sW, TM + 6, sT0, vMLa))
        E('ds_write_b64 v%d, %s' % (TM + 6, vr(TM + 4, 2)))

    TC = 84
    MLR = 92

    def coef_reads():
        return ['ds_read_b64 %s, v%d offset:%d' % (vr(MLR + 2 * w, 2), vMLa, 512 * w) for w in range(4)]

    def coef_ops():
        o = []
        o.append('v_max3_f32 v%d, v%d, v%d, v%d' % (vM, MLR, MLR + 2, MLR + 4))
        o.append('v_max_f32 v%d, v%d, v%d' % (vM, vM, MLR + 6))
        for w in range(4):
            o.append('v_sub_f32 v%d, v%d, v%d' % (CF + w, MLR + 2 * w, vM))
        for w in range(4):
            o.append('v_mul_f32 v%d, s%d, v%d' % (CF + w, sSig, CF + w))
        for w in range(4):
            o.append('v_exp_f32 v%d, v%d' % (CF + w, CF + w))
        o.append('v_mul_f32 v%d, v%d, v%d' % (vLp, CF, MLR + 1))
        for w in range(1, 4):
            o.append('v_fmac_f32 v%d, v%d, v%d' % (vLp, CF + w, MLR + 2 * w + 1))
        o.append('v_add_f32_dpp v%d, v%d, v%d row_ror:4 %s' % (vLp, vLp, vLp, DPPM))
        o.append('v_add_f32_dpp v%d, v%d, v%d row_ror:8 %s' % (vLp, vLp, vLp, DPPM))
        for sw in ('16', '32'):
            o.append('v_mov_b32 v%d, v%d' % (TC, vLp))
            o.append('v_permlane%s_swap_b32 v%d, v%d' % (sw, vLp, TC))
            o.append('v_add_f32 v%d, v%d, v%d' % (vLp, vLp, TC))
        o.append('v_rcp_f32 v%d, v%d' % (TC + 1, vLp))
        o.append('v_log_f32 v%d, v%d' % (TC + 2, vLp))
        for w in range(4):
            o.append('v_mul_f32 v%d, v%d, v%d' % (CF + w, CF + w, TC + 1))
        o.append('v_fma_f32 v%d, v%d, s%d, v%d' % (vLSE, vM, sSig, TC + 2))
        o.append('v_and_or_b32 v%d, v%d, s%d, v%d' % (vLSE, vLSE, sMsk, vTg))
        for k in range(1, 4):
            o.append('v_mov_b32 v%d, v%d' % (vLSE + k, vLSE))
        return o


    def publish_O(OF):
        tag([OF, OF + 1, OF + 4, OF + 5], vTg)
        E('s_mov_b64 exec, %s' % sr(sMN4, 2))
        lstore(['buffer_store_dwordx4 %s, v%d, %s, s%d offen' % (vr(OF, 4), vOSw, sr(sWS, 4), sOSb),
                'buffer_store_dwordx4 %s, v%d, %s, s%d offen offset:%d' % (vr(OF + 4, 4), vOSw, sr(sWS, 4), sOSb, OSC),
                's_mov_b32 exec_hi, 0',
                'buffer_store_dwordx4 %s, v%d, %s, s%d offen offset:256' % (vr(vLSE, 4), vLSw, sr(sWS, 4), sOSb)])
        E('s_mov_b64 exec, -1')

    def acc(wp, e):
        return SA + 8 * wp + 4 * e

    def fin_ops(wp, OF=72):
        o = []
        cp = CF + (wp & ~1)
        sel = 'op_sel:[0,%d%s] op_sel_hi:[1,%d%s]' % (wp & 1, ',0' if wp else '', wp & 1, ',1' if wp else '')
        for e in range(2):
            for r in range(0, 4, 2):
                if wp == 0:
                    o.append('v_pk_mul_f32 %s, %s, %s %s' % (vr(OF + 4 * e + r, 2), vr(acc(0, e) + r, 2), vr(cp, 2), sel))
                else:
                    o.append('v_pk_fma_f32 %s, %s, %s, %s %s' % (vr(OF + 4 * e + r, 2), vr(acc(wp, e) + r, 2), vr(cp, 2), vr(OF + 4 * e + r, 2), sel))
        return o

    sSt, sRet = 47, 48

    def sub_scores():
        stamp('A_b1')
        E('v_add_u32 v%d, %d, v%d' % (TM + 8, LDS_Q, vQf))
        E('v_mov_b32 v17, %d\nds_read_b64 %s, v17' % (LDS_SIG, vr(TM, 2)))
        for c in range(4):
            E('ds_read_b128 %s, v%d offset:%d' % (vr(QF + 4 * c, 4), TM + 8, 256 * c))
        E('s_waitcnt lgkmcnt(0)')
        E('v_readfirstlane_b32 s%d, v%d\nv_readfirstlane_b32 s%d, v%d' % (sSig, TM, sMode, TM + 1))
        scores_softmax(1)
        stamp('A_sm1')
        E('s_mov_b32 s%d, 1' % sSt)

    def announce():
        E('s_waitcnt lgkmcnt(0)\ns_mov_b64 exec, 1\nds_add_u32 v10, v8\ns_mov_b64 exec, -1\ns_mov_b32 s%d, 2' % sSt)

    def peek(addr_v, off, n, skip):
        E('ds_read_b32 v9, v%d offset:%d\ns_waitcnt lgkmcnt(0)\nv_cmp_gt_u32 vcc, %d, v9\ns_cbranch_vccnz %s' % (addr_v, off, n, skip))

    for t in range(8):
        if t < 4:
            E('s_waitcnt vmcnt(%d)' % (24 - 4 * t))
            for tt in (2 * t, 2 * t + 1):
                for c in range(4):
                    E('ds_read_b128 %s, v%d offset:%d' % (vr(KR + 16 * tt + 4 * c, 4), vKr[c], tt * 4096))
            E('s_waitcnt lgkmcnt(0)')
        if vwin:
            E('s_waitcnt vmcnt(%d)' % vwin)
        for i in range(4 * t, 4 * t + 4):
            kvload(i, sBv, vVo[i & 1], False)
        if t == 3:
            E('v_mov_b32 v%d, v14\nv_mov_b32 v10, %d\nv_mov_b32 v11, %d\nv_mov_b32 v8, 1\ns_mov_b32 s%d, 0' % (vXpF, LDS_CNT, LDS_QF, sSt))
            settag(vTg, 0)
        if t == aitile:
            E('s_mov_b64 exec, 1\nds_add_u32 v11, v8 offset:%d\ns_mov_b64 exec, -1' % (LDS_AI - LDS_QF))
        if 3 <= t < 7:
            n0, nx = E.label('Lc'), E.label('Lc')
            if t >= 6:
                n2 = E.label('Lc')
                E('s_cmp_lg_u32 s%d, 2\ns_cbranch_scc1 %s' % (sSt, n2))
                peek(10, 0, 4, nx)
                E('s_call_b64 %s, L_sub_pv\ns_branch %s\n%s:' % (sr(sRet, 2), nx, n2))
            E('s_cmp_lg_u32 s%d, 0\ns_cbranch_scc1 %s' % (sSt, n0))
            peek(11, 0, 1, nx)
            E('s_call_b64 %s, L_sub_s\n%s:' % (sr(sRet, 2), n0))
            if t >= 5:
                E('s_cmp_lg_u32 s%d, 1\ns_cbranch_scc1 %s\ns_waitcnt vmcnt(%d)' % (sSt, nx, 4 * (t + 1) - 16))
                announce()
            E(nx + ':')
    stamp('A_issued')
    n0, n1, n2 = E.label('Lc'), E.label('Lc'), E.label('Lc')
    E('s_cmp_lg_u32 s%d, 0\ns_cbranch_scc1 %s' % (sSt, n0))
    lds_wait(LDS_QF, 1, 11, 9, 1)
    E('s_call_b64 %s, L_sub_s\n%s:' % (sr(sRet, 2), n0))
    E('s_cmp_lg_u32 s%d, 1\ns_cbranch_scc1 %s\ns_waitcnt vmcnt(16)' % (sSt, n1))
    announce()
    E('%s:\ns_cmp_lg_u32 s%d, 2\ns_cbranch_scc1 %s' % (n1, sSt, n2))
    lds_wait(LDS_CNT, 4, 10, 9)
    E('s_call_b64 %s, L_sub_pv\n%s:' % (sr(sRet, 2), n2))

    def a_sync(n, vm):
        E('s_waitcnt vmcnt(%d) lgkmcnt(0)' % vm)
        stamp('A_w%d' % n)
        top = E.label('Lh')
        E('s_mov_b64 exec, 1\nds_add_u32 v10, v8\ns_mov_b64 exec, -1\ns_mov_b32 s%d, 0\n%s:\nds_read_b32 v9, v10' % (sCnt, top))
        E('s_add_u32 s%d, s%d, 1\ns_cmp_gt_u32 s%d, 0x8000\ns_cbranch_scc1 L_fail\ns_waitcnt lgkmcnt(0)' % (sCnt, sCnt, sCnt))
        E('v_cmp_gt_u32 vcc, %d, v9\ns_cbranch_vccnz %s' % (4 * (n + 1), top))
        stamp('A_s%d' % n)


    def unit_reads(sl, t, wp, withp=True):
        o = ['ds_read_b128 %s, v%d offset:%d' % (vr(sl, 4), vPXr, wp * 1024 + t * 64)] if withp else []
        for e in range(2):
            o += vfrag_reads(sl + 4 + 4 * e, wp, t, e)
        return o

    def unit_mfma(sl, t, wp, psl=None):
        return ['v_mfma_f32_16x16x32_bf16 %s, %s, %s, %s' % (vr(acc(wp, e), 4), vr(sl + 4 + 4 * e, 4), vr(sl if psl is None else psl, 4), '0' if t == 0 else vr(acc(wp, e), 4)) for e in range(2)]

    SLOT = [16, 64, 100]

    def stage(ts, first):
        units = [(t, wp) for t in ts for wp in range(4)]
        co = []
        if first:
            for st in coef_reads():
                E(st)
            co = coef_ops()
        for k in range(2):
            for st in unit_reads(SLOT[k], *units[k]):
                E(st)
        for k, (t, wp) in enumerate(units):
            if k + 2 < len(units):
                for st in unit_reads(SLOT[(k + 2) % 3], *units[k + 2]):
                    E(st)
                E('s_waitcnt lgkmcnt(10)')
            else:
                E('s_waitcnt lgkmcnt(%d)' % (5 if k + 1 < len(units) else 0))
            for st in unit_mfma(SLOT[k % 3], t, wp):
                E(st)
            for _ in range(5):
                if co:
                    E(co.pop(0))
        while co:
            E(co.pop(0))
    def subs():
        E('L_sub_s:')
        sub_scores()
        E('s_setpc_b64 %s\nL_sub_pv:' % sr(sRet, 2))
        stamp('A_s0')
        stage((0, 1), True)
        stamp('A_p0')
        E('s_mov_b32 s%d, 3\ns_setpc_b64 %s' % (sSt, sr(sRet, 2)))
    a_sync(1, 8)
    stage((2,), False)
    for wp in range(4):
        E('ds_read_b128 %s, v%d offset:%d' % (vr(16 + 4 * wp, 4), vPXr, wp * 1024 + 192))
    a_sync(2, 0)
    VB = [60, 68, 92, 100]
    for wp in range(4):
        for st in unit_reads(VB[wp], 3, wp, withp=False):
            E(st)
    for wp in range(4):
        E('s_waitcnt lgkmcnt(%d)' % (12 - 4 * wp))
        for st in unit_mfma(VB[wp], 3, wp, psl=16 + 4 * wp):
            E(st)
        if wp >= 2:
            for st in fin_ops(wp - 2):
                E(st)
    for st in fin_ops(2) + fin_ops(3):
        E(st)
    stamp('A_pv1')
    publish_O(72)
    E('s_barrier')
    if prew == 1:
        E('v_mov_b32 v16, -1\nv_mov_b32 v17, -1\nv_mov_b32 v18, -1\nv_mov_b32 v19, -1')
        if not dual:
            E('s_mov_b32 exec_hi, 0')
        for n in range(3):
            E('buffer_store_dwordx4 v[16:19], v%d, %s, s%d offen sc1' % (vXp, sr(sWS, 4), sXn[n]))
        E('s_mov_b64 exec, %s' % (sr(sMa, 2) if dual else '15'))
        E('buffer_store_dwordx4 v[16:19], v%d, %s, s%d offen sc1\ns_mov_b64 exec, -1' % (vXpF, sr(sWS, 4), sXn[3]))
    if maybe_stop('OS0'):
        pass
    else:
        RA, RBb = 16, 20

        def red_gather(vaddr, s0, s16, key, partial=False):
            def loads():
                E(('buffer_load_dwordx4 %s, v%d, %s, s%d offen @@' % (vr(RA, 4), vaddr, sr(sWS, 4), s0)).replace('@@', lpol))
                if partial:
                    E('s_mov_b64 exec, %s' % sr(sMb, 2))
                E(('buffer_load_dwordx4 %s, v%d, %s, s%d offen @@' % (vr(RBb, 4), vaddr, sr(sWS, 4), s16)).replace('@@', lpol))
                if partial:
                    E('s_mov_b64 exec, -1')
            poll(loads, lambda: check([RA, RBb], vTg, vAcc), key)
            quad_reduce(RA, RBb)

        def xpush(n, vT2, final=False):
            E('v_and_or_b32 v16, v16, s%d, v%d' % (sMsk, vT2))
            E('v_mov_b32 v17, v16\nv_permlane16_swap_b32 v16, v17\nv_mov_b32 v18, v16\nv_mov_b32 v19, v17')
            E('v_permlane32_swap_b32 v16, v18\nv_permlane32_swap_b32 v17, v19')
            if final:
                E('s_mov_b64 exec, %s' % ('0xff' if fullx else sr(sMa, 2) if dual else '15'))
            elif not dual and not fullx:
                E('s_mov_b32 exec_hi, 0')
            E('buffer_store_dwordx4 v[16:19], v%d, %s, s%d offen %s' % (vXpF if final else vXp, sr(sWS, 4), sXn[n], xst.replace('_', ' ')))
            if xnext and not final:
                if n == 2:
                    E('s_mov_b64 exec, 15')
                E('buffer_load_dwordx4 v[28:31], v%d, %s, s%d offen %s' % (vXpF if n == 2 else vXp, sr(sWS, 4), sXn[n + 1], xnext.replace('pl', '')))
            if final or (not dual and not fullx):
                E('s_mov_b64 exec, -1')

        vT2 = 5; vRs = 6
        set_mask(sMb, 0x0000FFFFFFFFFFFF)

        def ffn_half(layer):
            settag(vTg, 1 + 4 * layer); settag(vT2, layer)
            E('s_barrier')
            stamp('A_a%d' % layer)
            red_gather(vRgPull, sR0, sR16pull, 'ro%d' % layer)
            xpush(2 * layer, vT2)
            stamp('A_x%d' % (2 * layer + 1))
            E('s_barrier')
            if maybe_stop('XA%d' % layer):
                return True
            settag(vTg, 3 + 4 * layer)
            for k in range(4):
                E('v_mov_b32 v%d, v%d' % (RBb + k, vTg))
            E('s_barrier')
            stamp('A_c%d' % layer)
            E('ds_read_b64 %s, v%d' % (vr(vRs, 2), vSTr))
            red_gather(vRgPull, sR0, sR16pull, 'rd', partial=True)
            E('s_waitcnt lgkmcnt(0)')
            if layer == 0:
                E('v_mul_f32 v%d, v%d, v%d' % (RA, RA, vRs))
            else:
                E('v_fma_f32 v%d, v%d, v%d, v%d' % (RA, RA, vRs, vRs + 1))
            xpush(2 * layer + 1, vT2, final=(layer == 1))
            stamp('A_x%d' % (2 * layer + 2))
            E('s_barrier')
            if wb and layer == 1:
                skip = E.label('Lk')
                E('s_add_u32 s%d, s%d, 1\ns_and_b32 s%d, s%d, 7\ns_xor_b32 s%d, s%d, s%d\ns_or_b32 s%d, s%d, s%d\ns_cmp_lg_u32 s%d, 0\ns_cbranch_scc1 %s' % (sT0, sX, sT0, sT0, sT0, sT0, sJ, sT0, sT0, sW, sT0, skip))
                if wb > 1:
                    E('s_sleep %d' % (wb - 1))
                E('buffer_wbl2 sc1\n%s:' % skip)
            if xack:
                E('s_waitcnt vmcnt(0)')
                stamp('A_k%d' % (2 * layer + 2))
            return False

        if not ffn_half(0) and not maybe_stop('XB0'):
            settag(vTg, 4)
            E('s_barrier')
            stamp('A_e')
            red_gather(vRgPush, sR0, sR16push, 'rq')
            E('v_mov_b32 v17, v16\nv_permlane16_swap_b32 v16, v17\nv_cvt_pk_bf16_f32 v16, v16, v17\nv_min_u32 v16, -2, v16')
            E('s_mov_b64 exec, %s' % sr(sMa, 2))
            lstore(['buffer_store_dword v16, v%d, %s, s%d offen' % (vQSw, sr(sWS, 4), sQ1)])
            E('s_mov_b64 exec, -1')
            stamp('A_q1')
            E('s_lshl_b32 s%d, s%d, 10\ns_add_u32 s%d, s%d, s%d' % (sT2, sB, sT2, sT2, sQ1))
            settag(vTg, 1)

            def qloads():
                for c in range(4):
                    E(('buffer_load_dwordx4 %s, v%d, %s, s%d offen offset:%d @@' % (vr(QF + 4 * c, 4), vQf, sr(sWS, 4), sT2, 256 * c)).replace('@@', lpol))
            E('s_mov_b64 exec, %s' % sr(sMN4, 2))
            poll(qloads, lambda: check_sent(list(range(QF, QF + 16)), vAcc), 'q')
            E('s_mov_b64 exec, -1')
            stamp('A_qg')
            if pre34:
                E('s_mov_b32 exec_hi, 0\nbuffer_load_dwordx4 v[100:103], v%d, %s, s%d offen' % (vXp, sr(sWS, 4), sXn[2]))
                E('s_mov_b64 exec, 15\nbuffer_load_dwordx4 v[100:103], v%d, %s, s%d offen\ns_mov_b64 exec, -1' % (vXpF, sr(sWS, 4), sXn[3]))
            if not maybe_stop('QS1'):
                scores_softmax(2)
                late = []
                for n in range(20, 32):
                    late += vfrag_reads(fragreg[FR[n]], *FR[n])
                for st in late[:12]:
                    E(st)
                E('s_waitcnt lgkmcnt(12)')
                E('s_barrier')
                stamp('A_b6')
                PFb = [16, 64]
                OF2 = 104

                def preads(wp):
                    return ['ds_read_b128 %s, v%d offset:%d' % (vr(PFb[wp & 1] + 4 * t, 4), vPXr, wp * 1024 + t * 64) for t in range(4)]

                def fin1(wp):
                    return [('v_mul_f32 v%d, v%d, v%d' if wp == 0 else 'v_fmac_f32 v%d, v%d, v%d') % (OF2 + 4 * e + r, CF + wp, acc(wp, e) + r) for e in range(2) for r in range(4)]
                for st in preads(0):
                    E(st)
                E('ds_read_b128 %s, v81' % vr(CF, 4))
                co = ['v_max3_f32 v80, v%d, v%d, v%d' % (CF, CF + 1, CF + 2), 'v_max_f32 v80, v80, v%d' % (CF + 3), 'v_mul_f32_e64 v80, s%d, -v80' % sSig]
                co += ['v_fma_f32 v%d, v%d, s%d, v80' % (CF + w_, CF + w_, sSig) for w_ in range(4)] + ['v_exp_f32 v%d, v%d' % (CF + w_, CF + w_) for w_ in range(4)]
                fills = [preads(1) + late[12:], preads(2) + co, preads(3) + fin1(0) + fin1(1)[:4], fin1(1)[4:] + fin1(2)]
                for wp in range(4):
                    E('s_waitcnt lgkmcnt(%d)' % (1, 12, 0, 0)[wp])
                    fill = fills[wp]
                    for t in range(4):
                        for e in range(2):
                            E('v_mfma_f32_16x16x32_bf16 %s, %s, %s, %s' % (vr(acc(wp, e), 4), vr(fragreg[(wp, t, e)], 4), vr(PFb[wp & 1] + 4 * t, 4), '0' if t == 0 else vr(acc(wp, e), 4)))
                            for _ in range(2):
                                if fill:
                                    E(fill.pop(0))
                    assert not fill
                E('s_mov_b64 exec, %s' % sr(sMN4, 2))
                for st in fin_ops(3, OF2):
                    E(st)
                stamp('A_pv2')
                tag([OF2, OF2 + 4], vTg)
                lstore(['buffer_store_dwordx4 %s, v%d, %s, s%d offen' % (vr(OF2, 4), vOSw, sr(sWS, 4), sOSb),
                        'buffer_store_dwordx4 %s, v%d, %s, s%d offen offset:%d' % (vr(OF2 + 4, 4), vOSw, sr(sWS, 4), sOSb, OSC)])
                E('s_mov_b64 exec, -1')
                E('s_barrier')
                if not maybe_stop('OS1'):
                    ffn_half(1)
        finish_wave()

    subs()
    E('L_B:')
    WQ, WG, WO, WD = 128, 144, 160, 176
    XRES, ACT = 208, 212
    DA = 216
    srd(sWS, 26, WS_USED)

    def prewrite(arrs=(0, 1, 2, 3), wave=2):
        skip = E.label('Lk')
        E('s_cmp_lg_u32 s%d, %d\ns_cbranch_scc1 %s' % (sW, wave, skip))
        E('s_lshl_b32 s%d, s%d, 15\ns_lshl_b32 s%d, s%d, 8\ns_add_u32 s%d, s%d, s%d' % (sT0, sJ, sT1, sX, sT0, sT0, sT1))
        E('v_lshl_add_u32 v9, v12, 11, v3\nv_add_u32 v9, s%d, v9\nv_add_u32 v10, 16384, v9' % sT0)
        E('v_mov_b32 v20, -1\nv_mov_b32 v21, -1\nv_mov_b32 v22, -1\nv_mov_b32 v23, -1')
        for n in [q for q in arrs if q < 3]:
            E('s_mov_b32 s%d, %d' % (sXn[n], XA + 0x100000 * xarr[n]))
            for a_ in (9, 10):
                E(('buffer_load_dwordx4 v[20:23], v%d, %s, s%d offen ' + prd if prd not in ('w', 'p') else 'buffer_store_dwordx4 v[20:23], v%d, %s, s%d offen' + (' sc1' if prd == 'w' else '')) % (a_, sr(sWS, 4), sXn[n]))
        if 3 not in arrs:
            E(skip + ':')
            return
        E('s_mov_b32 s%d, %d' % (sXn[3], XA + 0x100000 * xarr[3]))
        E('s_and_b32 s%d, s%d, 3\ns_lshl_b32 s%d, s%d, 11\ns_add_u32 s%d, s%d, s%d\ns_and_b32 s%d, s%d, 4\ns_lshl_b32 s%d, s%d, 12\ns_add_u32 s%d, s%d, s%d' % (sT1, sJ, sT1, sT1, sT0, sT0, sT1, sT1, sJ, sT1, sT1, sT0, sT0, sT1))
        E('v_add_u32 v9, s%d, v3\ns_mov_b64 exec, 0xffff' % sT0)
        E(('buffer_load_dwordx4 v[20:23], v9, %s, s%d offen ' + prd if prd not in ('w', 'p') else 'buffer_store_dwordx4 v[20:23], v9, %s, s%d offen' + (' sc1' if prd == 'w' else '')) % (sr(sWS, 4), sXn[3]))
        E('s_mov_b64 exec, -1')
        E(skip + ':')

    lj = E.label('Lk')
    E('s_cmp_lg_u32 s%d, %d\ns_cbranch_scc1 %s' % (sW, 9 if nopf else 1, lj))
    E('s_getpc_b64 s[100:101]\nL_pc:\ns_sub_u32 s100, s100, L_pc-%s_kernel\ns_subb_u32 s101, s101, 0' % KNAME)
    E('s_lshl_b32 s%d, s%d, 10\ns_min_u32 s%d, s%d, L_codeend-%s_kernel-1024' % (sT0, sJ, sT0, sT0, KNAME))
    E('v_add_u32 v9, s%d, v%d\nglobal_load_dwordx4 v[124:127], v9, s[100:101]' % (sT0, bL16))
    E(lj + ':')
    if tlb:
        skip = E.label('Lk')
        E('s_cmp_lg_u32 s%d, 2\ns_cbranch_scc1 %s' % (sW, skip))
        E('s_lshl_b32 s%d, s%d, 19\nv_mov_b32 v9, s%d\nv_mov_b32 v11, 0\ns_mov_b64 exec, 1' % (sT0, sX, sT0))
        E('global_load_dword v124, v9, s[12:13] nt\nglobal_load_dword v125, v11, s[20:21] nt\nglobal_load_dword v126, v11, s[22:23] nt')
        E('v_mov_b32 v9, %d\nv_mov_b32 v11, %d' % (RB + 0x100, XA))
        E('global_load_dword v127, v9, s[26:27] nt\nglobal_load_dword v123, v11, s[26:27] nt\ns_mov_b64 exec, -1')
        E(skip + ':')
    srd(sBv, 16, 1835008); srd(sC, 18, 1835008)
    E('s_mul_i32 s%d, s%d, %d\ns_mul_i32 s%d, s%d, 448\ns_add_u32 s%d, s%d, s%d\ns_lshl_b32 s%d, s%d, 7\ns_add_u32 s%d, s%d, s%d' % (sT0, sJ, 16 * 3584, sT1, sX, sT0, sT0, sT1, sT1, sW, sT0, sT0, sT1))
    set_mask(sM1, 0x0F0F0F0F0F0F0F0F)
    E('s_cmp_eq_u32 s%d, 3\ns_cselect_b64 exec, %s, -1' % (sW, sr(sM1, 2)))
    for mtx in range(2):
        for i in range(2):
            E('s_add_u32 m0, s%d, %d\ns_add_u32 s%d, s%d, %d' % (sT3, S1 + 2048 * mtx + 1024 * i, sT1, sT0, i * 8 * 3584))
            E('buffer_load_dwordx4 v5, %s, s%d offen %s lds' % (sr(sBv if mtx == 0 else sC, 4), sT1, wpol))
    E('s_mov_b64 exec, -1')
    sGWv, sGWb = 100, 101
    E('s_getreg_b32 s%d, hwreg(HW_REG_XCC_ID, 0, 4)\ns_and_b32 s%d, s%d, 7' % (sT0, sT0, sT0))
    E('s_lshl_b32 s%d, s%d, 12\ns_add_u32 s%d, s%d, %d' % (sGWb, sX, sGWb, sGWb, GW))
    E('s_waitcnt lgkmcnt(0)')
    E('s_mul_i32 s%d, s%d, 0x9e3779b1\ns_add_u32 s%d, s%d, 0x7f4a7c15\ns_and_b32 s%d, s%d, -8\ns_or_b32 s%d, s%d, s%d' % (sGWv, sE, sGWv, sGWv, sGWv, sGWv, sGWv, sGWv, sT0))
    skip = E.label('Lk')
    E('s_cmp_lg_u32 s%d, %d\ns_cbranch_scc1 %s' % (sW, 9 if (noclr or not xc & 4) else 3, skip))
    E('s_lshl_b32 s%d, s%d, 2\nv_mov_b32 v44, s%d\nv_mov_b32 v45, s%d\ns_mov_b64 exec, 1' % (sT0, sJ, sT0, sGWv))
    E('buffer_store_dword v45, v44, %s, s%d offen sc1\ns_mov_b64 exec, -1' % (sr(sWS, 4), sGWb))
    E(skip + ':')
    bQSw = 101
    bTrW, bTrG, bTrD = 102, 103, 104
    bSPush, bSPull, bXr, bOSr, bLSr, bRG, bSTw, bTrO, bMean, bMu, bMacc, bOut, bRDs = range(105, 118)
    RM = 96
    bTg, bAcc, bT2, bGW = 118, 119, 120, 121
    sCSb, sCMb, sR4push = sM2, sM2 + 1, sM3
    sG4 = sM3 + 1
    E('s_mul_i32 s%d, s%d, %d\ns_add_u32 s%d, s%d, %d\ns_add_u32 s%d, s%d, %d\ns_mov_b32 s%d, 0xffffff00' % (sR0, sX, RX, sR0, sR0, RB, sR4push, sR0, 4 * RU, sMsk))
    E('v_bfe_u32 v46, v1, 2, 2\nv_lshlrev_b32 v47, 3, v14\nv_lshl_add_u32 v47, v12, 5, v47')
    E('v_lshl_add_u32 v%d, v46, 8, v47\ns_add_u32 s%d, s%d, %d\nv_add_u32 v%d, s%d, v%d' % (bTrW, sT0, sT3, S0, bTrW, sT0, bTrW))
    E('s_lshl_b32 s%d, s%d, 3\nv_add_u32 v48, s%d, v12' % (sT0, sW, sT0))
    E('v_mul_u32_u24 v%d, %d, v48\nv_add_u32 v%d, v%d, v3\ns_lshl_b32 s%d, s%d, 8\nv_add_u32 v%d, s%d, v%d' % (bSPush, RU, bSPush, bSPush, sT1, sJ, bSPush, sT1, bSPush))
    E('v_mov_b32 v34, 0x3f803f80\nv_mov_b32 v35, 0\nv_mov_b32 v36, 0')
    E('s_waitcnt vmcnt(8)')
    stamp('B_x')
    for k in range(4):
        E('v_dot2_f32_bf16 v35, v%d, v34, v35' % (16 + k))
    for k in range(4):
        E('v_dot2_f32_bf16 v36, v%d, v%d, v36' % (16 + k, 16 + k))
    for r in (35, 36):
        E('v_add_f32_dpp v%d, v%d, v%d quad_perm:[1,0,3,2] %s' % (r, r, r, DPPM))
        E('v_add_f32_dpp v%d, v%d, v%d quad_perm:[2,3,0,1] %s' % (r, r, r, DPPM))
        allred_dpp('v_add_f32', r); allred_rows('v_add_f32', r, 37)
    E('v_mul_f32 v40, 0x%x, v35' % f32(1 / 512.))
    E('v_mul_f32 v37, v40, v40\nv_mov_b32 v38, 0x%x\nv_fma_f32 v36, v36, v38, -v37' % f32(1 / 512.))
    E('v_max_f32 v36, 0, v36\nv_add_f32 v36, 0x%x, v36\nv_rsq_f32 v36, v36\nv_mul_f32 v41, 0x%x, v36' % (f32(1e-5), f32(SCALE)))
    E('v_mov_b32 v42, 1\nv_mov_b32 v43, 1\ns_lshl_b32 s%d, s%d, 4\ns_add_u32 s%d, s%d, %d\nv_mov_b32 v37, s%d' % (sT0, sW, sT0, sT0, LDS_HS, sT0))
    E('ds_write_b128 v37, v[40:43]')
    E('v_lshlrev_b32 v37, 4, v14\nv_add_u32 v37, %d, v37' % LDS_HS)

    def unpack_x(src):
        E('v_lshlrev_b32 v%d, 16, v%d\nv_and_b32 v%d, 0xffff0000, v%d' % (XRES, src, XRES + 1, src))
        E('v_lshlrev_b32 v%d, 16, v%d\nv_and_b32 v%d, 0xffff0000, v%d' % (XRES + 2, src + 1, XRES + 3, src + 1))
    unpack_x(32)

    def wreg(W, t, k):
        return W + 8 * t + 2 * k

    def tr_std(W, base_off):
        for t in range(2):
            for k in range(4):
                E('ds_read_b64_tr_b16 %s, v%d offset:%d' % (vr(wreg(W, t, k), 2), bTrW, base_off + 1024 * k + 128 * t))

    def gemv16(W, act, d0, fill=()):
        fill = list(fill)
        for k in range(4):
            for t in range(2):
                E('v_mfma_f32_4x4x4_16b_bf16 %s, %s, %s, %s blgp:%d' % (vr(d0 + 4 * t, 4), vr(wreg(W, t, k), 2), vr(act, 2), '0' if k == 0 else vr(d0 + 4 * t, 4), 4 + k))
                if fill:
                    E(fill.pop(0))
        for f_ in fill:
            E(f_)

    def push_stores(d0, second=True):
        o = ['buffer_store_dwordx4 %s, v%d, %s, s%d offen' % (vr(d0, 4), bSPush, sr(sWS, 4), sR0)]
        if second:
            o.append('buffer_store_dwordx4 %s, v%d, %s, s%d offen' % (vr(d0 + 4, 4), bSPush, sr(sWS, 4), sR4push))
        return o

    def l_gw(r):
        E(('buffer_load_dword v%d, v%d, %s, s%d offen @@' % (r, bGW, sr(sWS, 4), sGWb)).replace('@@', lpol))

    def c_gw(r):
        E('v_xor_b32 v%d, s%d, v%d\nv_cmp_ne_u32 vcc, 0, v%d\ns_cmp_eq_u64 vcc, 0\ns_cselect_b32 s%d, %d, 0' % (bAcc, sGWv, r, bAcc, sMode, 0 if force_slow else 1))
        E('v_cmp_lt_u32 vcc, 7, v%d' % bAcc)
    settag(bTg, 0)
    top = E.label('Lh')
    E('s_mov_b32 s%d, 0\n%s:\nds_read_b128 v[40:43], v37\ns_add_u32 s%d, s%d, 1\ns_cmp_gt_u32 s%d, 0x8000\ns_cbranch_scc1 L_fail' % (sCnt, top, sCnt, sCnt, sCnt))
    E('s_waitcnt lgkmcnt(0)\nv_cmp_ne_u32 vcc, 1, v42\ns_cbranch_vccnz %s' % top)
    E('v_readlane_b32 s%d, v41, s%d' % (sSig, sB))
    for k in range(4):
        E('v_sub_f32 v%d, v%d, v40' % (XRES + k, XRES + k))
    E('v_cvt_pk_bf16_f32 v%d, v%d, v%d\nv_cvt_pk_bf16_f32 v%d, v%d, v%d\nv_mov_b32 v%d, v40' % (ACT, XRES, XRES + 1, ACT + 1, XRES + 2, XRES + 3, bMean))
    E('s_waitcnt vmcnt(4)')
    stamp('B_wq')
    tr_std(WQ, 0)
    E('s_waitcnt lgkmcnt(0)')
    gemv16(WQ, ACT, DA)
    tag(range(DA, DA + 8), bTg)
    for st in push_stores(DA):
        if nob != 3:
            E(st)
    stamp('B_rq0')
    common_consts()
    srd(sOUT, 22, 4096); srd(sD, 20, 1835008)
    E('v_bfe_u32 v41, v1, 2, 2')
    E('v_lshlrev_b32 v42, 3, v14\nv_lshl_add_u32 v42, v12, 5, v42')
    E('v_and_b32 v43, 1, v14\nv_lshlrev_b32 v43, 3, v43\nv_lshl_add_u32 v43, v12, 4, v43\nv_lshrrev_b32 v44, 1, v14\nv_lshl_add_u32 v43, v44, 11, v43')
    E('v_lshl_add_u32 v%d, v41, 7, v43\nv_add_u32 v%d, s%d, v%d\nv_add_u32 v%d, %d, v%d' % (bTrG, bTrG, sT3, bTrG, bTrG, S1, bTrG))
    E('v_and_b32 v43, 1, v41\nv_lshlrev_b32 v43, 1, v43\nv_lshrrev_b32 v44, 1, v41\nv_or_b32 v43, v43, v44')
    E('v_lshl_add_u32 v%d, v43, 10, v42\nv_add_u32 v%d, %d, v%d' % (bTrD, bTrD, LDS_WD, bTrD))
    E('s_lshl_b32 s%d, s%d, 3\nv_add_u32 v43, s%d, v12' % (sT0, sW, sT0))
    E('s_mul_i32 s%d, s%d, %d\nv_lshl_add_u32 v%d, v43, 8, v3\nv_add_u32 v%d, s%d, v%d' % (sT1, sJ, RU, bSPull, bSPull, sT1, bSPull))
    E('v_lshlrev_b32 v%d, 4, v1\nv_add_u32 v%d, s%d, v%d' % (bRDs, bRDs, sT1, bRDs))
    E('s_lshl_b32 s%d, s%d, 8\ns_add_u32 s%d, s%d, %d\nv_lshl_add_u32 v%d, v41, 10, v42\nv_add_u32 v%d, s%d, v%d' % (sT0, sW, sT0, sT0, S0, bTrO, bTrO, sT0, bTrO))
    E('v_lshlrev_b32 v44, 4, v14\nv_lshl_add_u32 v44, v12, 6, v44\nv_lshl_add_u32 v45, v41, 8, v44')
    E('s_lshl_b32 s%d, s%d, 15\ns_and_b32 s%d, s%d, 3\ns_lshl_b32 s%d, s%d, 11\ns_add_u32 s%d, s%d, s%d' % (sT0, sJ, sT1, sX, sT1, sT1, sT0, sT0, sT1))
    E('s_and_b32 s%d, s%d, 4\ns_lshl_b32 s%d, s%d, 12\ns_add_u32 s%d, s%d, s%d\nv_add_u32 v%d, s%d, v45' % (sT1, sX, sT1, sT1, sT0, sT0, sT1, bXr, sT0))
    E('s_mul_i32 s%d, s%d, %d\nv_add_u32 v%d, s%d, v45' % (sT1, sJ, RU, bRG, sT1))
    E('v_mul_u32_u24 v44, 320, v41\nv_lshl_add_u32 v44, v14, 4, v44\ns_mul_i32 s%d, s%d, %d\nv_add_u32 v%d, s%d, v44' % (sT0, sJ, OSC, bLSr, sT0))
    E('v_lshl_add_u32 v%d, v12, 6, v%d' % (bOSr, bLSr))
    E('v_lshrrev_b32 v44, 5, v1\nv_lshlrev_b32 v44, 4, v44\nv_lshl_add_u32 v44, v14, 2, v44\ns_lshl_b32 s%d, s%d, 5\nv_add_u32 v%d, s%d, v44' % (sT0, sJ, bSTw, sT0))
    if fullx:
        E('v_lshlrev_b32 v44, 4, v14\nv_lshl_add_u32 v44, v12, 7, v44\nv_lshl_add_u32 v44, v41, 9, v44')
        E('s_lshl_b32 s%d, s%d, 3\ns_add_u32 s%d, s%d, s%d\ns_lshl_b32 s%d, s%d, 12\nv_add_u32 v%d, s%d, v44' % (sT0, sJ, sT0, sT0, sX, sT0, sT0, bXr, sT0))
    if xsel:
        E('v_add_u32 v%d, 8192, v%d' % (bXr, bXr))
    E('v_mov_b32 v%d, v8' % bOut)
    E('v_and_b32 v%d, 31, v1\nv_lshlrev_b32 v%d, 2, v%d' % (bGW, bGW, bGW))
    E('s_add_u32 s%d, s%d, %d' % (sR4push, sR0, 4 * RU))
    E('s_cmp_eq_u32 s%d, 3\ns_cselect_b32 s%d, %d, s%d' % (sW, sG4, WS_USED, sR4push))

    E('v_lshrrev_b32 v44, 5, v1\nv_lshlrev_b32 v44, 6, v44\nv_and_b32 v45, 1, v12\nv_lshl_add_u32 v44, v45, 3, v44\nv_lshl_add_u32 v44, v14, 10, v44')
    E('s_and_b32 s%d, s%d, 7\ns_lshl_b32 s%d, s%d, 7\ns_lshl_b32 s%d, s%d, 4\ns_add_u32 s%d, s%d, s%d\nv_add_u32 v%d, s%d, v44' % (sT0, sJ, sT0, sT0, sT1, sB, sT0, sT0, sT1, bQSw, sT0))
    E('s_waitcnt vmcnt(2)')
    for t in range(2):
        for k in range(4):
            E('ds_read_b64_tr_b16 %s, v%d offset:%d' % (vr(wreg(WG, t, k), 2), bTrG, 512 * k + 64 * t))
    E('s_waitcnt lgkmcnt(0)')
    E('v_mov_b32 v9, %d\nv_mov_b32 v10, 1\ns_mov_b64 exec, 1\nds_add_u32 v9, v10\ns_mov_b64 exec, -1' % LDS_GC)
    stamp('B_gu')

    if prew == 2:
        prewrite()
    if nob >= 2:
        E('s_branch L_nob')

    def backoff_poll(loads, chk, first, again):
        top = E.label('Lp'); ok = E.label('Lo')
        E('s_mov_b32 s%d, 0\ns_sleep %d\n%s:' % (sCnt, first, top))
        loads()
        E('s_waitcnt vmcnt(0)')
        chk()
        E('s_cbranch_vccz %s\ns_sleep %d\ns_add_u32 s%d, s%d, 1\ns_cmp_lt_u32 s%d, 0x1000\ns_cbranch_scc1 %s\ns_branch L_fail\n%s:' % (ok, again, sCnt, sCnt, sCnt, top, ok))

    def rg_loads(pol=lpol):
        for i in range(8):
            E('buffer_load_dwordx4 %s, v%d, %s, s%d offen offset:%d %s' % (vr(16 + 4 * i, 4), bRG, sr(sWS, 4), sR0 if i < 4 else sR16push, 1024 * (i & 3), pol))

    def rg_sum():
        for st in (16, 8, 4):
            for i in range(0, st, 2):
                E('v_pk_add_f32 %s, %s, %s' % (vr(16 + i, 2), vr(16 + i, 2), vr(16 + st + i, 2)))
        for ro in (4, 8):
            for k in range(4):
                E('v_add_f32_dpp v%d, v%d, v%d row_ror:%d %s' % (16 + k, 16 + k, 16 + k, ro, DPPM))

    def restore():
        for st in push_stores(DA):
            E(st + ' sc1')

    def restore_if_slow():
        done = E.label('Lk')
        E('s_cmp_lg_u32 s%d, 0\ns_cbranch_scc1 %s' % (sMode, done))
        restore()
        E(done + ':')

    w0 = E.label('Lw'); join = E.label('Lj')
    E('s_cmp_eq_u32 s%d, 0\ns_cbranch_scc1 %s' % (sW, w0))
    if xa & 2:
        backoff_poll(lambda: l_gw(48), lambda: c_gw(48), cfirst, 8)
        restore_if_slow()
    if prew == 3:
        prewrite()
    E('s_cmp_lg_u32 s%d, 1\ns_cbranch_scc1 %s' % (sW, join))
    E('v_mov_b32 v10, -1\nv_bfe_u32 v9, v1, 3, 2\nv_lshlrev_b32 v9, 10, v9\nv_lshl_add_u32 v9, v14, 2, v9\nv_bfe_u32 v11, v1, 2, 1\nv_lshl_add_u32 v9, v11, 6, v9')
    E('s_and_b32 s%d, s%d, 7\ns_lshl_b32 s%d, s%d, 7\ns_lshl_b32 s%d, s%d, 4\ns_add_u32 s%d, s%d, s%d\ns_add_u32 s%d, s%d, s%d' % (sT0, sJ, sT0, sT0, sT1, sB, sT0, sT0, sT1, sT2, sT0, sQ1))
    E('s_mov_b32 exec_hi, 0')
    lstore(['buffer_store_dword v10, v9, %s, s%d offen' % (sr(sWS, 4), sT2)])
    E('s_mov_b64 exec, -1')
    E('s_branch %s' % join)
    E(w0 + ':')
    sRest = sDBG

    def l_a():
        if xa & 2:
            l_gw(48)
        if xa & 1:
            rg_loads(apol)

    def c_a():
        if xa != 7:
            E('s_mov_b32 s%d, 1\ns_mov_b64 vcc, 0' % sMode)
            return
        c_gw(48)
        E('s_mov_b64 %s, vcc' % sr(sM1, 2))
        back = E.label('Lb')
        E('s_cbranch_vccnz %s\ns_or_b32 s%d, s%d, s%d\ns_cbranch_scc1 %s' % (back, sT0, sMode, sRest, back))
        restore()
        E('s_mov_b32 s%d, 1\n%s:' % (sRest, back))
        check(list(range(16, 48)), bTg, bAcc)
        E('s_or_b64 vcc, vcc, %s' % sr(sM1, 2))
    E('s_mov_b32 s%d, 0' % sRest)
    backoff_poll(l_a, c_a, afirst, agap)
    if stamps and not dbgst and not light:
        E('s_add_u32 s96, s%d, 1\nv_writelane_b32 v%d, s96, 60' % (sCnt, vStamp))
    rg_sum()
    E('s_lshr_b32 s%d, s%d, 16\nv_mov_b32 v49, s%d\ns_mov_b32 s%d, 0x07060100' % (sT0, sGWv, sT0, sT1))
    for k in range(4):
        E('v_cvt_pk_bf16_f32 v%d, v%d, v%d' % (16 + k, 16 + k, 16 + k))
    for k in range(4):
        E('v_perm_b32 v%d, v%d, v49, s%d' % (16 + k, 16 + k, sT1))
    E('s_lshl_b32 s%d, s%d, 13\ns_add_u32 s%d, s%d, %d\nv_lshlrev_b32 v9, 1, v%d' % (sT2, sX, sT2, sT2, Q0A, bQSw))
    E('s_mov_b64 exec, %s' % sr(sMN4, 2))
    lstore(['buffer_store_dwordx4 v[16:19], v9, %s, s%d offen' % (sr(sWS, 4), sT2)])
    E('s_mov_b64 exec, -1')
    stamp('B_q0')
    E('s_lshl_b32 s%d, s%d, 11\ns_add_u32 s%d, s%d, s%d\nv_lshlrev_b32 v9, 5, v1' % (sT0, sB, sT2, sT2, sT0))

    def l_b(b):
        E('buffer_load_dwordx4 %s, v9, %s, s%d offen %s' % (vr(b, 4), sr(sWS, 4), sT2, apol))
        E('buffer_load_dwordx4 %s, v9, %s, s%d offen offset:16 %s' % (vr(b + 4, 4), sr(sWS, 4), sT2, apol))

    def c_b(b):
        E('v_xor_b32 v%d, v%d, v49' % (bAcc, b))
        for r in range(b + 1, b + 8):
            E('v_bitop3_b32 v%d, v%d, v%d, v49 bitop3:0xf6' % (bAcc, bAcc, r))
        E('v_and_b32 v%d, 0xffff, v%d\nv_cmp_ne_u32 vcc, 0, v%d' % (bAcc, bAcc, bAcc))
    poll_pipe(2, 8, 224, l_b, c_b, 24, 8, bD, bfirst, bgap)
    E('s_mov_b32 s%d, 0x07060302' % sT1)
    for k in range(4):
        E('v_perm_b32 v%d, v%d, v%d, s%d' % (20 + k, 25 + 2 * k, 24 + 2 * k, sT1))
    lds_wait(LDS_GC, 4, 9, 10)
    E('v_add_u32 v9, %d, v%d\nds_write_b128 v9, v[20:23]' % (LDS_Q, bL16))
    E('v_mov_b32 v9, %d\nv_mov_b32 v20, s%d\nv_mov_b32 v21, s%d\nds_write_b64 v9, v[20:21]' % (LDS_SIG, sSig, sMode))
    E('v_mov_b32 v9, %d\nv_mov_b32 v10, 1\ns_waitcnt lgkmcnt(0)\nds_write_b32 v9, v10' % LDS_QF)
    stamp('B_qg0')
    E(join + ':')

    def wo_loads():
        srd(sA, 12, 4194304)
        E('s_lshl_b32 s%d, s%d, 19\ns_lshl_b32 s%d, s%d, 14\ns_add_u32 s%d, s%d, s%d\ns_add_u32 s%d, s%d, s%d' % (sT0, sX, sT1, sJ, sT0, sT0, sT1, sT0, sT0, sT3))
        for i in range(4):
            E('s_add_u32 m0, s%d, %d\ns_add_u32 s%d, s%d, %d' % (sT3, S0 + 1024 * i, sT1, sT0, i * 1024))
            E('buffer_load_dwordx4 v%d, %s, s%d offen %s lds' % (bL16, sr(sA, 4), sT1, wpol))

    def row_means(vaddr, off, d):
        for i in range(4):
            E('ds_read_b128 %s, v%d offset:%d' % (vr(48 + 4 * i, 4), vaddr, off + 1024 * i))
        E('v_mov_b32 v47, 0x3f803f80')
        for i in range(4):
            E('s_waitcnt lgkmcnt(%d)' % (3 - i))
            E('v_dot2_f32_bf16 v%d, v%d, v47, 0' % (d + i, 48 + 4 * i))
        for q in range(1, 4):
            for i in range(4):
                E('v_dot2_f32_bf16 v%d, v%d, v47, v%d' % (d + i, 48 + 4 * i + q, d + i))
        E('v_permlane32_swap_b32 v%d, v%d\nv_permlane32_swap_b32 v%d, v%d' % (d, d + 2, d + 1, d + 3))
        E('v_add_f32 v%d, v%d, v%d\nv_add_f32 v%d, v%d, v%d' % (d, d, d + 2, d + 1, d + 1, d + 3))
        E('v_permlane16_swap_b32 v%d, v%d\nv_add_f32 v%d, v%d, v%d' % (d, d + 1, d, d, d + 1))
        allred_dpp('v_add_f32', d)
        E('v_add_f32_dpp v%d, v%d, v%d quad_perm:[1,0,3,2] %s' % (d, d, d, DPPM))
        E('v_add_f32_dpp v%d, v%d, v%d quad_perm:[2,3,0,1] %s' % (d, d, d, DPPM))
        E('v_mul_f32 v%d, 0x%x, v%d' % (d, f32(1 / 512.), d))

    def wd_loads():
        skip = E.label('Lk')
        E('s_cmp_lg_u32 s%d, 3\ns_cbranch_scc1 %s\ns_cmp_ge_u32 s%d, 28\ns_cbranch_scc1 %s' % (sW, skip, sJ, skip))
        E('s_mul_i32 s%d, s%d, %d\ns_lshl_b32 s%d, s%d, 13\ns_add_u32 s%d, s%d, s%d' % (sT0, sX, 224 * 1024, sT1, sJ, sT0, sT0, sT1))
        for i in range(8):
            E('s_mov_b32 m0, %d\ns_add_u32 s%d, s%d, %d' % (LDS_WD + 1024 * i, sT1, sT0, i * 1024))
            E('buffer_load_dwordx4 v%d, %s, s%d offen %s lds' % (bL16, sr(sD, 4), sT1, wpol))
        E(skip + ':')

    def wd_frags(wait=False):
        skip = E.label('Lk')
        E('s_cmp_lg_u32 s%d, 3\ns_cbranch_scc1 %s' % (sW, skip))
        if wait:
            E('s_waitcnt vmcnt(0)')
        for t in range(8):
            for q in range(2):
                E('ds_read_b64_tr_b16 %s, v%d offset:%d' % (vr(WD + 4 * t + 2 * q, 2), bTrD, 4096 * q + 128 * t))
        E('v_add_u32 v9, %d, v%d' % (LDS_WD, bL16))
        row_means(9, 0, 64)
        row_means(9, 4096, 68)
        E('v_lshlrev_b32 v9, 2, v12\nv_add_u32 v9, %d, v9\nds_write2_b32 v9, v64, v68 offset0:0 offset1:4' % LDS_WD)
        E('v_and_b32 v9, 1, v12\nv_lshlrev_b32 v9, 4, v9\nv_lshrrev_b32 v10, 1, v12\nv_lshl_add_u32 v9, v10, 2, v9\nv_add_u32 v9, %d, v9' % LDS_WD)
        E('s_waitcnt lgkmcnt(0)\nds_read2_b32 v[10:11], v9 offset0:0 offset1:2\ns_waitcnt lgkmcnt(0)\nv_mov_b32 v100, v10\nv_mov_b32 v123, v11')
        E(skip + ':')

    def touch_inbox():
        skip = E.label('Lk')
        E('s_cmp_lg_u32 s%d, 0\ns_cbranch_scc1 %s' % (sW, skip))
        E('s_mul_i32 s%d, s%d, %d\ns_add_u32 s%d, s%d, s%d' % (sT0, sJ, OSC, sT0, sT0, sOSb))
        for o in (0, 1024, 1536):
            E('buffer_load_dwordx4 v[124:127], v%d, %s, s%d offen offset:%d %s' % (bL16, sr(sWS, 4), sT0, o, tpol))
        E(skip + ':')

    def touch_shared():
        skip = E.label('Lk')
        E('s_cmp_lg_u32 s%d, 1\ns_cbranch_scc1 %s' % (sW, skip))
        E('s_lshl_b32 s%d, s%d, 7\ns_add_u32 s%d, s%d, s%d\nv_mov_b32 v9, s%d' % (sT0, sJ, sT1, sT0, sQ1, sT1))
        E('s_lshr_b32 s%d, s%d, 3\ns_min_u32 s%d, s%d, 2\ns_lshl_b32 s%d, s%d, 13\ns_and_b32 s%d, s%d, 0x380\ns_add_u32 s%d, s%d, s%d\ns_add_u32 s%d, s%d, s%d\nv_writelane_b32 v9, s%d, 1' % (sT1, sJ, sT1, sT1, sT1, sT1, sT0, sT0, sT1, sT1, sT0, sT1, sT1, sSTb, sT1))
        E('s_mov_b64 exec, 3\nbuffer_load_dword v124, v9, %s, 0 offen %s\ns_mov_b64 exec, -1' % (sr(sWS, 4), tpol))
        E(skip + ':')

    E('L_nob:')
    E('s_waitcnt lgkmcnt(0)')
    stamp('B_init')
    lds_wait(LDS_GC, 4, 9, 10)
    if wdwhen == 2:
        wd_loads()
    lds_wait(LDS_AI, 4, 9, 10, 4)
    wo_loads()
    if prew == 4:
        prewrite()
    touch_inbox()
    if touchR:
        E('s_mul_i32 s%d, s%d, %d\ns_lshl_b32 s%d, s%d, 11\ns_add_u32 s%d, s%d, s%d\ns_add_u32 s%d, s%d, s%d' % (sT0, sJ, RU, sT1, sW, sT0, sT0, sT1, sT0, sT0, sR0))
        for o in (0, 1024):
            E('buffer_load_dwordx4 v[124:127], v%d, %s, s%d offen offset:%d %s' % (bL16, sr(sWS, 4), sT0, o, tpol))
    touch_shared()
    if wdwhen == 0:
        wd_loads()
    E('v_mov_b32 v%d, 0\ns_add_u32 s%d, s%d, %d\nv_add_u32 v9, s%d, v%d' % (bMu, sT0, sT3, S0, sT0, bL16))
    E('v_lshlrev_b32 v10, 2, v12\ns_lshl_b32 s%d, s%d, 4\ns_add_u32 s%d, s%d, %d\nv_add_u32 v10, s%d, v10' % (sT0, sW, sT0, sT0, LDS_RM, sT0))
    if cntw:
        nr = 2 if touchR else 0
        l3, lw = E.label('Lk'), E.label('Lk')
        E('s_cmp_eq_u32 s%d, 0\ns_cbranch_scc0 %s\ns_waitcnt vmcnt(%d)\ns_branch %s\n%s:' % (sW, l3, 3 + nr, lw, l3))
        if wdwhen == 0:
            l4 = E.label('Lk')
            E('s_cmp_eq_u32 s%d, 3\ns_cbranch_scc0 %s\ns_cmp_lt_u32 s%d, 28\ns_cbranch_scc0 %s\ns_waitcnt vmcnt(%d)\ns_branch %s\n%s:' % (sW, l4, sJ, l4, 8 + nr, lw, l4))
        E('s_waitcnt vmcnt(%d)\n%s:' % (nr, lw))
    else:
        E('s_waitcnt vmcnt(0)')
    row_means(9, 0, 64)
    E('ds_write_b32 v10, v64')
    if probe:
        def pr(addrv, sb, idx):
            for rep in range(2):
                E('s_memtime s[4:5]\ns_waitcnt lgkmcnt(0)\nbuffer_load_dwordx4 v[16:19], v%d, %s, s%d offen nt\ns_waitcnt vmcnt(0)\ns_memtime s[6:7]\ns_waitcnt lgkmcnt(0)' % (addrv, sr(sWS, 4), sb))
                E('s_sub_u32 s4, s6, s4\nv_writelane_b32 v%d, s4, %d' % (vStamp, idx + rep))
        E('s_sleep 40')
        E('s_lshl_b32 s%d, s%d, 10\ns_add_u32 s%d, s%d, s%d' % (sT2, sB, sT2, sT2, sQ1))
        pr(bL16, sT2, 50)
        pr(bRG, sR0, 52)
        E('s_add_u32 s%d, s%d, 16384' % (sT2, sSTb))
        pr(bL16, sT2, 54)
        pr(bOSr, sOSb, 56)
    E('s_waitcnt lgkmcnt(0)')
    stamp('B_w')

    def oproj(layer):
        settag(bTg, layer); settag(bT2, 1 + 4 * layer)
        E('s_barrier')
        stamp('B_f%d' % layer)
        if stop == 'OS%d' % layer:
            return True

        nl = 4 if layer == 0 else 2

        def loads():
            for i in range(2):
                E('buffer_load_dword%s %s, v%d, %s, s%d offen offset:%d %s' % ('x%d' % nl, vr(24 + 4 * i, nl), bLSr, sr(sWS, 4), sOSb, 256 + 1280 * i, lpol))
            for i in range(2):
                E('buffer_load_dwordx4 %s, v%d, %s, s%d offen offset:%d %s' % (vr(16 + 4 * i, 4), bOSr, sr(sWS, 4), sOSb, 1280 * i, lpol))
        if layer == 0:
            for t in range(2):
                for k in range(4):
                    E('ds_read_b64_tr_b16 %s, v%d offset:%d' % (vr(wreg(WO, t, k), 2), bTrO, 4096 * k + 128 * t))
            E('v_lshlrev_b32 v9, 4, v12\nv_add_u32 v9, %d, v9\nds_read_b128 %s, v9' % (LDS_RM, vr(RM, 4)))
        poll(loads, lambda: check(([16, 17, 20, 21] if layer == 0 else [16, 20]) + list(range(24, 24 + nl)) + list(range(28, 28 + nl)), bTg, bAcc), 'os%d' % layer)
        stamp('B_og%d' % layer)
        E('v_max_f32 v26, v24, v28')
        allred_dpp('v_max_f32', 26)
        E('v_sub_f32 v24, v24, v26\nv_sub_f32 v28, v28, v26\nv_exp_f32 v24, v24\nv_exp_f32 v28, v28')
        for k in (0, 2):
            E('v_pk_mul_f32 %s, %s, v[24:25] op_sel_hi:[1,0]' % (vr(16 + k, 2), vr(16 + k, 2)))
        E('v_add_f32 v26, v24, v28' if layer == 0 else 'v_mul_f32 v26, v24, v25')
        for k in (0, 2):
            E('v_pk_fma_f32 %s, %s, v[28:29], %s op_sel_hi:[1,0,1]' % (vr(16 + k, 2), vr(20 + k, 2), vr(16 + k, 2)))
        if layer == 1:
            E('v_fmac_f32 v26, v28, v29')
        for ro in (4, 8):
            E('v_add_f32_dpp v26, v26, v26 row_ror:%d %s' % (ro, DPPM))
            for k in range(4):
                E('v_add_f32_dpp v%d, v%d, v%d row_ror:%d %s' % (16 + k, 16 + k, 16 + k, ro, DPPM))
        E('v_rcp_f32 v26, v26')
        for k in (0, 2):
            E('v_pk_mul_f32 %s, %s, v[26:27] op_sel_hi:[1,0]' % (vr(16 + k, 2), vr(16 + k, 2)))
        E('v_cvt_pk_bf16_f32 v%d, v16, v17\nv_cvt_pk_bf16_f32 v%d, v18, v19' % (ACT, ACT + 1))
        if layer == 0:
            E('s_waitcnt lgkmcnt(0)')
        mu = ['v_mul_f32 v26, v16, v%d' % RM] + ['v_fmac_f32 v26, v%d, v%d' % (16 + k, RM + k) for k in range(1, 4)]
        for sw in ('16', '32'):
            mu += ['v_mov_b32 v27, v26', 'v_permlane%s_swap_b32 v26, v27' % sw, 'v_add_f32 v26, v26, v27']
        gemv16(WO, ACT, DA, mu)
        for k in range(0, 8, 2):
            E('v_pk_add_f32 %s, %s, v[26:27] op_sel_hi:[1,0] neg_lo:[0,1] neg_hi:[0,1]' % (vr(DA + k, 2), vr(DA + k, 2)))
        tag([DA, DA + 4], bT2)
        lstore(['buffer_store_dwordx4 %s, v%d, %s, s%d offen' % (vr(DA, 4), bSPull, sr(sWS, 4), sR0),
                'buffer_store_dwordx4 %s, v%d, %s, s%d offen offset:1024' % (vr(DA + 4, 4), bSPull, sr(sWS, 4), sR0)])
        stamp('B_ro%d' % layer)
        E('s_barrier')
        if layer == 0:
            E('v_mov_b32 v%d, v26' % bMacc)
            if wdwhen == 1:
                wd_loads()
                E('s_waitcnt vmcnt(0)')
            if wdwhen != 3:
                wd_frags()
            stamp('B_ctr')
        else:
            skip = E.label('Lk')
            E('s_cmp_lg_u32 s%d, 3\ns_cbranch_scc1 %s' % (sW, skip))
            E('v_add_f32 v30, v%d, v26' % bMacc)
            settag(31, 0)
            tag([30], 31)
            E('s_add_u32 s%d, s%d, %d\ns_mov_b64 exec, 15' % (sT2, sSTb, 8192 * 2))
            lstore(['buffer_store_dword v30, v%d, %s, s%d offen' % (bSTw, sr(sWS, 4), sT2)])
            E('s_mov_b64 exec, -1')
            E(skip + ':')
        return False

    def xr(n):
        def loads():
            for i in range(2):
                E('buffer_load_dwordx4 %s, v%d, %s, s%d offen offset:%d %s' % (vr(16 + 4 * i, 4), bXr, sr(sWS, 4), sXn[n], (2048 if fullx else 1024) * i, xpol))
        poll(loads, lambda: check([16, 18, 20, 22], bTg, bAcc), 'x')
        for k in (0, 2):
            E('v_pk_add_f32 %s, %s, %s' % (vr(16 + k, 2), vr(16 + k, 2), vr(20 + k, 2)))
        for ro in (4, 8):
            for k in range(4):
                E('v_add_f32_dpp v%d, v%d, v%d row_ror:%d %s' % (16 + k, 16 + k, 16 + k, ro, DPPM))
        for k in (0, 2):
            E('v_pk_add_f32 %s, %s, %s' % (vr(16 + k, 2), vr(16 + k, 2), vr(XRES + k, 2)))
        E('v_cvt_pk_bf16_f32 v%d, v16, v17\nv_cvt_pk_bf16_f32 v%d, v18, v19' % (ACT, ACT + 1))

    def keep_x():
        for q in range(4):
            E('v_mov_b32 v%d, v%d' % (XRES + q, 16 + q))

    def publish_stats(k):
        keep_x()
        skip = E.label('Lk')
        E('s_cmp_lg_u32 s%d, 2\ns_cbranch_scc1 %s' % (sW, skip))
        E('v_mul_f32 v30, v%d, v%d' % (XRES, XRES))
        for q in range(1, 4):
            E('v_fmac_f32 v30, v%d, v%d' % (XRES + q, XRES + q))
        allred_rows('v_add_f32', 30, 31)
        settag(31, 0)
        tag([30], 31)
        E('s_add_u32 s%d, s%d, %d' % (sT2, sSTb, 8192 * k))
        E('s_mov_b64 exec, 15')
        lstore(['buffer_store_dword v30, v%d, %s, s%d offen offset:16' % (bSTw, sr(sWS, 4), sT2)])
        E('s_mov_b64 exec, -1')
        E(skip + ':')

    def b_stats(k, sigma):
        skip = E.label('Lk')
        E('s_cmp_lg_u32 s%d, 1\ns_cbranch_scc1 %s' % (sW, skip))
        E('s_add_u32 s%d, s%d, %d' % (sT2, sSTb, 8192 * k))
        settag(28, 0)
        E('v_lshrrev_b32 v29, 2, v1\nv_lshlrev_b32 v29, 5, v29\nv_lshl_add_u32 v29, v14, 2, v29')

        offs = (16, 528, 0, 512) if k == 2 else (16, 528)

        def loads():
            for n, off in enumerate(offs):
                E('buffer_load_dword v%d, v29, %s, s%d offen offset:%d %s' % (24 + n, sr(sWS, 4), sT2, off, lpol))
        poll(loads, lambda: check(list(range(24, 24 + len(offs))), 28, bAcc), 'st')
        E('v_add_f32 v24, v24, v25')
        allred_dpp('v_add_f32', 24); allred_rows('v_add_f32', 24, 25)
        if k == 2:
            E('v_add_f32 v25, v26, v27')
            allred_dpp('v_add_f32', 25); allred_rows('v_add_f32', 25, 26)
        E('v_mov_b32 v27, 0x%x\nv_mov_b32 v26, 0x%x\nv_fma_f32 v24, v24, v27, v26' % (f32(1 / 512.), f32(1e-5)))
        if sigma:
            E('v_rsq_f32 v24, v24\nv_mul_f32 v24, 0x%x, v24\nv_min_u32 v24, -2, v24\nv_readlane_b32 s%d, v24, s%d' % (f32(SCALE), sT0, sB))
            E('v_mov_b32 v24, s%d\nv_mov_b32 v25, %d\nds_write_b32 v25, v24' % (sT0, LDS_SIG))
        else:
            E('v_rcp_f32 v24, v24\nv_lshlrev_b32 v26, 3, v14\nv_add_u32 v26, %d, v26\nds_write_b64 v26, v[24:25]' % LDS_RS)
        E('s_waitcnt lgkmcnt(0)')
        E(skip + ':')

    def ffn(layer):
        settag(bTg, layer); settag(bT2, 2 + 4 * layer)
        E('s_barrier')
        if stop == 'XA%d' % layer:
            return True
        if wdwhen == 3 and layer == 0:
            wd_loads()
            wd_frags(True)
        xr(2 * layer)
        stamp('B_xr%d' % (2 * layer + 1))
        gemv16(WG, ACT, DA)
        tag([DA, DA + 4], bT2)
        notw3 = E.label('Lw'); join = E.label('Lj')
        ps = push_stores(DA)
        lstore([ps[0], ps[1].replace('s%d offen' % sR4push, 's%d offen' % sG4)])
        E('s_cmp_lg_u32 s%d, 3\ns_cbranch_scc1 %s' % (sW, notw3))
        stamp('B_rg%d' % layer)
        keep_x()
        if pre2 and layer == 0:
            go = E.label('Lk')
            E('s_cmp_lt_u32 s%d, 28\ns_cbranch_scc1 %s' % (sJ, go))
            E('s_sub_u32 s%d, s%d, 28\ns_lshl_b32 s%d, s%d, 18\ns_lshl_b32 s%d, s%d, 8\ns_add_u32 s%d, s%d, s%d\ns_add_u32 s%d, s%d, s%d' % (sT0, sJ, sT0, sT0, sT1, sX, sT0, sT0, sT1, sT0, sT0, sXn[1]))
            E('v_lshrrev_b32 v9, 1, v1\nv_and_b32 v10, 3, v9\nv_lshrrev_b32 v9, 2, v9\nv_lshlrev_b32 v9, 14, v9\nv_lshl_add_u32 v9, v10, 11, v9\nv_and_b32 v10, 1, v1\nv_lshl_add_u32 v9, v10, 7, v9')
            E('s_add_u32 s%d, s%d, 0x20000\ns_sleep %d' % (sT1, sT0, pre2))
            E('buffer_load_dword v20, v9, %s, s%d offen\nbuffer_load_dword v21, v9, %s, s%d offen' % (sr(sWS, 4), sT0, sr(sWS, 4), sT1))
            E('s_branch %s\n%s:' % (join, go))
        else:
            E('s_cmp_ge_u32 s%d, 28\ns_cbranch_scc1 %s' % (sJ, join))
        settag(bTg, 3 + 4 * layer)

        poll(rg_loads, lambda: check([16 + 4 * i for i in range(8)], bT2, bAcc), 'rg')
        stamp('B_gg%d' % layer)
        rg_sum()
        E('v_permlane32_swap_b32 v16, v17\nv_permlane32_swap_b32 v18, v19')
        E('v_max_f32 v16, 0, v16\nv_max_f32 v18, 0, v18\nv_mul_f32 v16, v16, v17\nv_mul_f32 v18, v18, v19')
        E('v_cvt_pk_bf16_f32 v20, v16, v18')
        c0 = '0'
        if layer == 0:
            E('v_mul_f32_e64 v24, v16, -v100\nv_mov_b32 v21, v20\nv_fma_f32 v24, v18, -v123, v24\nv_permlane32_swap_b32 v20, v21')
            allred_rows('v_add_f32', 24, 25)
            E('v_mov_b32 v25, v24\nv_mov_b32 v26, v24\nv_mov_b32 v27, v24')
            c0 = 'v[24:27]'
        else:
            E('v_mov_b32 v21, v20\nv_permlane32_swap_b32 v20, v21')
        for q in range(2):
            for t in range(8):
                E('v_mfma_f32_4x4x4_16b_bf16 %s, %s, v[20:21], %s blgp:%d' % (vr(DA + 4 * t, 4), vr(WD + 4 * t + 2 * q, 2), c0 if q == 0 else vr(DA + 4 * t, 4), 4 + q))
        if layer == 0:
            E('v_mov_b32 v%d, v24' % bMu)
        tag(range(DA, DA + 32, 4), bTg)
        lstore(['buffer_store_dwordx4 %s, v%d, %s, s%d offen offset:%d' % (vr(DA + 4 * t, 4), bRDs, sr(sWS, 4), sR0 if t < 4 else sR16push, 1024 * (t & 3)) for t in range(8)])
        stamp('B_rd%d' % layer)
        E('s_branch %s\n%s:' % (join, notw3))
        publish_stats(2 * layer)
        b_stats(2 * layer, False)
        E(join + ':')
        E('s_barrier')
        if layer == 0:
            E('v_lshlrev_b32 v9, 3, v14\nv_add_u32 v9, %d, v9\nds_read_b32 v10, v9\ns_waitcnt lgkmcnt(0)\nv_fma_f32 v%d, -v%d, v10, v%d' % (LDS_RS, bMacc, bMu, bMacc))
        return False

    done = oproj(0) or ffn(0)
    if not done:
        settag(bTg, 0); settag(bT2, 4)
        E('v_mov_b32 v24, -1\nv_mov_b32 v25, %d\nds_write_b32 v25, v24\ns_waitcnt lgkmcnt(0)' % LDS_SIG)
        E('s_barrier')
        if stop != 'XB0':
            xr(1)
            stamp('B_xr2')
            gemv16(WQ, ACT, DA)
            tag([DA, DA + 4], bT2)
            lstore(push_stores(DA))
            publish_stats(1)
            E('s_barrier')
            b_stats(1, True)
            if stop != 'QS1':
                if prew in (7, 8):
                    E('s_sleep %d' % pdel)
                    prewrite((2, 3))
                skip, j6 = E.label('Lk'), E.label('Lj')
                E('s_cmp_lg_u32 s%d, 0\ns_cbranch_scc1 %s' % (sW, skip))
                E('v_lshlrev_b32 v9, 4, v14\nv_add_u32 v9, %d, v9' % LDS_CF)
                E('v_add_u32 v10, %d, v%d\nv_mov_b32 v46, %d\nv_mov_b32 v47, 0x3f803f80' % (LDS_PX, bL16, LDS_SIG))
                E('v_lshrrev_b32 v45, 2, v1\nv_lshl_add_u32 v45, v14, 3, v45\nv_mul_u32_u24 v45, %d, v45' % OSC)
                E('s_and_b32 s%d, s%d, 7\ns_mul_i32 s%d, s%d, 320\ns_lshl_b32 s%d, s%d, 4\ns_add_u32 s%d, s%d, s%d\nv_add_u32 v45, s%d, v45' % (sT0, sJ, sT0, sT0, sT1, sB, sT0, sT0, sT1, sT0))
                settag(44, 1)
                E('s_barrier')
                E('ds_read_b128 v[16:19], v9\nds_read_b32 v20, v46')
                for w_ in range(4):
                    E('ds_read_b128 %s, v10 offset:%d' % (vr(48 + 4 * w_, 4), 1024 * w_))
                E('s_waitcnt lgkmcnt(4)\nv_max3_f32 v21, v16, v17, v18\nv_max_f32 v21, v21, v19')
                for w_ in range(4):
                    E('v_sub_f32 v%d, v%d, v21' % (16 + w_, 16 + w_))
                for w_ in range(4):
                    E('v_mul_f32 v%d, v20, v%d' % (16 + w_, 16 + w_))
                for w_ in range(4):
                    E('v_exp_f32 v%d, v%d' % (16 + w_, 16 + w_))
                E('s_waitcnt lgkmcnt(0)')
                for q in range(4):
                    for w_ in range(4):
                        E('v_dot2_f32_bf16 v%d, v%d, v47, %s' % (24 + w_, 48 + 4 * w_ + q, '0' if q == 0 else 'v%d' % (24 + w_)))
                E('v_mul_f32 v22, v16, v24')
                for w_ in range(1, 4):
                    E('v_fmac_f32 v22, v%d, v%d' % (16 + w_, 24 + w_))
                allred_dpp('v_add_f32', 22); allred_rows('v_add_f32', 22, 23)
                E('v_mul_f32 v24, v21, v20\nv_mov_b32 v25, v22')
                tag([24, 25], 44)
                E('s_mov_b32 exec_hi, 0')
                lstore(['buffer_store_dwordx2 v[24:25], v45, %s, s%d offen offset:256' % (sr(sWS, 4), sOSb)])
                E('s_mov_b64 exec, -1\ns_branch %s\n%s:\ns_barrier\n%s:' % (j6, skip, j6))
                if not (oproj(1) or ffn(1)):
                    settag(bTg, 1)
                    for k in range(4):
                        E('v_add_f32 v%d, v%d, v%d' % (XRES + k, XRES + k, bMean))
                    E('s_barrier')
                    E('s_and_b32 s%d, s%d, 7\ns_cmp_lg_u32 s%d, s%d\ns_cbranch_scc1 L_exit' % (sT0, sJ, sT0, sX))
                    E('s_cmp_lg_u32 s%d, 0\ns_cbranch_scc1 L_exit' % sW)
                    xr(3)
                    E('s_mov_b64 exec, %s' % sr(sMN4, 2))
                    E('buffer_store_dwordx2 %s, v%d, %s, 0 offen' % (vr(ACT, 2), bOut, sr(sOUT, 4)))
                    E('s_mov_b64 exec, -1')
                    stamp('B_out')
                    E('s_cmp_lg_u32 s2, 0\ns_cbranch_scc1 L_exit')
                    E('s_add_u32 s%d, s%d, 16\nv_mov_b32 v16, s%d\nv_mov_b32 v17, 0\ns_mov_b64 exec, 1' % (sT0, sE, sT0))
                    E('buffer_store_dword v16, v17, %s, 0 offen\ns_mov_b64 exec, -1' % sr(sWS, 4))
    E('s_branch L_exit')

    for s in stubs:
        E(s)
    E('L_fail:')
    if stamps:
        E('s_mov_b64 exec, -1\nv_writelane_b32 v%d, -1, 63' % vStamp)
    E('L_exit:')
    if calib:
        E('s_add_u32 s3, s3, 6000\nL_cal:\ns_sleep 2\ns_memrealtime s[96:97]\ns_waitcnt lgkmcnt(0)\ns_sub_u32 s4, s96, s14\ns_cmp_lt_u32 s4, s3\ns_cbranch_scc1 L_cal')
    if stamps and light:
        E('s_mov_b64 exec, -1\ns_waitcnt lgkmcnt(0)\nv_writelane_b32 v%d, s14, 0\ns_cmp_ge_u32 s%d, 4\ns_cbranch_scc1 L_lb' % (vStamp, sWave))
        for idx, p in lightuse['A']:
            E('v_writelane_b32 v%d, s%d, %d' % (vStamp, p, idx))
        E('s_branch L_lj\nL_lb:')
        for idx, p in lightuse['B']:
            E('v_writelane_b32 v%d, s%d, %d' % (vStamp, p, idx))
        E('L_lj:')
    if stamps:
        E('s_mov_b64 exec, -1')
        E('s_lshl_b32 s%d, s2, 3\ns_add_u32 s%d, s%d, s%d\ns_lshl_b32 s%d, s%d, 8' % (sT0, sT0, sT0, sWave, sT0, sT0))
        E('s_add_u32 s4, s26, s%d\ns_addc_u32 s5, s27, 0\ns_add_u32 s4, s4, 0x%x\ns_addc_u32 s5, s5, 0' % (sT0, STAMP))
        E('v_lshlrev_b32 v16, 2, v1\nglobal_store_dword v16, v%d, s[4:5]' % vStamp)
        if dbgst:
            E('v_readlane_b32 s4, v%d, 0\nv_cmp_ne_u32 vcc, 0, v%d\nv_subrev_u32 v17, s4, v%d\nv_cndmask_b32 v17, 0, v17, vcc' % (vStamp, vStamp, vStamp))
            E('s_mov_b32 s8, s24\ns_mov_b32 s9, s25\ns_mov_b32 s10, 256\ns_mov_b32 s11, 0x20000\ns_mov_b64 exec, 0xfcfc')
            E('buffer_atomic_umax v17, v16, s[8:11], 0 offen')
    E('L_end:')
    E('s_endpgm')
    E('L_codeend:')

    body = E.finish()
    ref = open('cdna_kernels/%s.s.ref' % KNAME).read().split('\n')
    hdr = [l for l in ref if l.startswith(';') and '@launch' not in l][:16]
    txt = '\n'.join(hdr) + '\n; @launch grid=(256,1,1) block=(512,1,1) lds=%d\n' % LDS_TOTAL
    txt += '.amdgcn_target "amdgcn-amd-amdhsa--gfx950"\n.text\n.globl %s_kernel\n.p2align 8\n.type %s_kernel,@function\n%s_kernel:\n' % (KNAME, KNAME, KNAME)
    txt += body
    txt += '''.section .rodata,"a"
.p2align 6
.amdhsa_kernel %s_kernel
  .amdhsa_next_free_vgpr 256
  .amdhsa_next_free_sgpr 102
  .amdhsa_accum_offset 256
  .amdhsa_group_segment_fixed_size 0
  .amdhsa_kernarg_size 96
  .amdhsa_user_sgpr_count 2
  .amdhsa_user_sgpr_kernarg_segment_ptr 1
  .amdhsa_system_sgpr_workgroup_id_x 1
.end_amdhsa_kernel
''' % KNAME
    stamp_names['_cnts'] = cnames
    return txt, stamp_names


if __name__ == '__main__':
    import argparse, json
    ap = argparse.ArgumentParser()
    ap.add_argument('-o', default='cdna_kernels/%s.s' % KNAME)
    ap.add_argument('--stop', default=None)
    ap.add_argument('--stamps', action='store_true')
    ap.add_argument('--opt', action='append', default=[])
    a = ap.parse_args()
    kw = {}
    for o in a.opt:
        k, v = o.split('=')
        try:
            v = int(v)
        except ValueError:
            pass
        kw[k] = v
    if 'light' in kw:
        kw['light'] = kw['light'].split(',')
    if 'dbgst' in kw:
        kw['dbgst'] = kw['dbgst'].split(',')
    txt, names = build(stop=a.stop, stamps=a.stamps, **kw)
    open(a.o, 'w').write(txt)
    if a.stamps:
        json.dump(names, open(a.o + '.json', 'w'))
    print('wrote', a.o, len(txt), 'bytes', txt.count('\n'), 'lines')
```
